```python
import torch

def _softmax(x, axis=-1):
    return torch.softmax(x, dim=axis)
def _gelu(x):
    return torch.nn.functional.gelu(x, approximate="tanh")
def _silu(x):
    return torch.nn.functional.silu(x)
def _sigmoid(x):
    return torch.sigmoid(x)
def _layernorm(x, axis=-1, eps=1e-5):
    m = x.mean(dim=axis, keepdim=True)
    v = x.var(dim=axis, keepdim=True, unbiased=False)
    return (x - m) / torch.sqrt(v + eps)
def _scatter_add(tgt, idx, src, axis=0):
    return tgt.clone().index_add_(axis, idx, src)
def _segment_sum(src, seg, n):
    out = torch.zeros((n,) + src.shape[1:], dtype=src.dtype)
    return out.index_add_(0, seg, src)
def _pad(x, pw):
    flat = tuple(v for pair in reversed(pw) for v in pair)
    return torch.nn.functional.pad(x, flat)

kernel_name = 'parallel_sum__ssm_conv_s5__geglu_ffn__prompt'

def setup_inputs():

    _w = (lambda a: (lambda t: t.to(torch.bfloat16) if t.is_floating_point() else t)(torch.as_tensor(a)))
    def _A_setup():
        B, S, D = 1, 2048, 640
        P = D
        Lambda_re = -0.5 * (lambda _x: torch.exp(torch.as_tensor(_x)))((lambda *s: torch.randn(*s, dtype=torch.bfloat16) * 0.8)(P))
        Lambda_im = (lambda *s: torch.randn(*s, dtype=torch.bfloat16) * 0.8)(P) * 1.0
        B_re = (lambda *s: torch.randn(*s, dtype=torch.bfloat16) * 0.8)(P, D) * (D ** -0.5)
        B_im = (lambda *s: torch.randn(*s, dtype=torch.bfloat16) * 0.8)(P, D) * (D ** -0.5)
        C_re = (lambda *s: torch.randn(*s, dtype=torch.bfloat16) * 0.8)(D, P) * (P ** -0.5)
        C_im = (lambda *s: torch.randn(*s, dtype=torch.bfloat16) * 0.8)(D, P) * (P ** -0.5)
        log_dt = (lambda *s: torch.randn(*s, dtype=torch.bfloat16) * 0.8)(P) * 0.3 - 2.0
        Dskip = (lambda *s: torch.randn(*s, dtype=torch.bfloat16) * 0.8)(D)
        return {
            "x": _w((lambda *s: torch.randn(*s, dtype=torch.bfloat16) * 0.05)(B, S, D)),
            "Lambda_re": _w(Lambda_re),
            "Lambda_im": _w(Lambda_im),
            "B_re": _w(B_re),
            "B_im": _w(B_im),
            "C_re": _w(C_re),
            "C_im": _w(C_im),
            "log_dt": _w(log_dt),
            "Dskip": _w(Dskip),
        }
    _A_in = _A_setup()

    def _B_setup():
        B, S, D, F = 1, 2048, 640, 1728
        return {
            "x": _w((lambda *s: torch.randn(*s, dtype=torch.bfloat16) * 0.05)(B, S, D)),
            "w_gate": _w((lambda *s: torch.randn(*s, dtype=torch.bfloat16) * 0.05)(D, F)),
            "w_up": _w((lambda *s: torch.randn(*s, dtype=torch.bfloat16) * 0.05)(D, F)),
            "w_down": _w((lambda *s: torch.randn(*s, dtype=torch.bfloat16) * 0.05)(F, D)),
        }
    _B_in = _B_setup()

    return {
        "A_x": _A_in["x"],
        "A_Lambda_re": _A_in["Lambda_re"],
        "A_Lambda_im": _A_in["Lambda_im"],
        "A_B_re": _A_in["B_re"],
        "A_B_im": _A_in["B_im"],
        "A_C_re": _A_in["C_re"],
        "A_C_im": _A_in["C_im"],
        "A_log_dt": _A_in["log_dt"],
        "A_Dskip": _A_in["Dskip"],
        "B_x": _B_in["x"],
        "B_w_gate": _B_in["w_gate"],
        "B_w_up": _B_in["w_up"],
        "B_w_down": _B_in["w_down"],
    }

def reference(A_x, A_Lambda_re, A_Lambda_im, A_B_re, A_B_im, A_C_re, A_C_im, A_log_dt, A_Dskip, B_x, B_w_gate, B_w_up, B_w_down):
    def _A_ref(x, Lambda_re, Lambda_im, B_re, B_im, C_re, C_im, log_dt, Dskip):
        Bsz, L, H = x.shape
        Lam = Lambda_re + 1j * Lambda_im
        Bmat = B_re + 1j * B_im
        Cmat = C_re + 1j * C_im
        dt = torch.exp(log_dt)
        Lam_bar = torch.exp(dt * Lam)
        B_bar = ((Lam_bar - 1.0) / Lam)[:, None] * Bmat
        Bu = torch.einsum("bld,pd->blp", x + 0j, B_bar)
        h = torch.zeros_like(Bu[:, 0, :])
        hs = []
        for t in range(L):
            h = Lam_bar[None, :] * h + Bu[:, t, :]
            hs.append(h)
        hseq = torch.stack(hs, 1)
        y = 2.0 * torch.einsum("blp,dp->bld", hseq, Cmat).real + x * Dskip[None, None, :]
        return y

    def _B_ref(x, w_gate, w_up, w_down):
        return (_gelu(x @ w_gate) * (x @ w_up)) @ w_down

    x = A_x
    xn = _layernorm(x, axis=-1)
    return x + _A_ref(xn, A_Lambda_re, A_Lambda_im, A_B_re, A_B_im, A_C_re, A_C_im, A_log_dt, A_Dskip) + _B_ref(xn, B_w_gate, B_w_up, B_w_down)
```

```python
import re

def _regs(tok):
    tok = tok.strip()
    tok = tok.lstrip('-')
    if tok.startswith('abs(') or tok.startswith('|'):
        tok = tok.replace('abs(', '').replace(')', '').replace('|', '')
    m = re.fullmatch(r'([vas])(\d+)', tok)
    if m: return {(m.group(1), int(m.group(2)))}
    m = re.fullmatch(r'([vas])\[(\d+):(\d+)\]', tok)
    if m: return {(m.group(1), i) for i in range(int(m.group(2)), int(m.group(3)) + 1)}
    if tok in ('vcc', 'vcc_lo', 'vcc_hi'): return {('s', 'vcc')}
    if tok in ('exec', 'exec_lo', 'exec_hi'): return {('s', 'exec')}
    if tok == 'm0': return {('s', 'm0')}
    return set()

TRANS = ('v_exp_f32', 'v_log_f32', 'v_rcp_f32', 'v_rsq_f32', 'v_sqrt_f32', 'v_sin_f32', 'v_cos_f32')

VMEM_COST = [4]
class I:
    def __init__(self, text, waits=None, comment=None):
        self.text = text
        self.waits = waits
        self.comment = comment
        self.kind = None
        self.rd = set(); self.wr = set()
        self.passes = 0
        self.parse()
    def parse(self):
        t = self.text
        if self.waits is not None:
            self.kind = 'wait'; return
        if t.endswith(':') or t.startswith('.') or t.startswith(';'):
            self.kind = 'label'; return
        sp = t.split(None, 1)
        op = sp[0]; self.op = op
        rest = sp[1] if len(sp) > 1 else ''
        ops = []; depth = 0; cur = ''
        for ch in rest:
            if ch in '[(': depth += 1
            if ch in '])': depth -= 1
            if ch == ',' and depth == 0: ops.append(cur); cur = ''
            else: cur += ch
        if cur.strip(): ops.append(cur)
        mods = ''
        if ops:
            last = ops[-1].strip().split(None, 1)
            ops[-1] = last[0]
            mods = last[1] if len(last) > 1 else ''
        ops = [o.strip() for o in ops]
        self.ops = ops; self.mods = mods
        R = [_regs(o) for o in ops]
        U = lambda xs: set().union(*xs) if xs else set()
        if op.startswith('v_mfma'):
            self.kind = 'mfma'
            self.wr = R[0]; self.a = R[1]; self.b = R[2]; self.c = R[3]
            self.rd = R[1] | R[2] | R[3]
            self.passes = 8 if '32x32x16' in op else 4 if '16x16x32' in op else 2 if '4x4x4' in op else None
            assert self.passes
        elif op.startswith('buffer_load') or op.startswith('global_load'):
            self.kind = 'vmem'
            if 'lds' in mods.split():
                self.dma = True; self.rd = U(R) | {('s', 'm0')}
            else:
                self.dma = False; self.wr = R[0]; self.rd = U(R[1:])
            self.store = False
        elif op.startswith('buffer_store'):
            self.kind = 'vmem'; self.store = True; self.dma = False
            self.rd = U(R); self.sdata = R[0]
        elif op.startswith('global_store'):
            self.kind = 'vmem'; self.store = True; self.dma = False
            self.rd = U(R); self.sdata = R[1]
        elif op.startswith('ds_read') or op.startswith('ds_bpermute') or op.startswith('ds_swizzle'):
            self.kind = 'lds'; self.wr = R[0]; self.rd = U(R[1:])
        elif op.startswith('ds_write'):
            self.kind = 'lds'; self.rd = U(R)
        elif op.startswith('s_load') or op.startswith('s_memtime') or op.startswith('s_memrealtime'):
            self.kind = 'smem'; self.wr = R[0]; self.rd = U(R[1:])
        elif op.startswith('v_'):
            self.kind = 'valu'
            if op.startswith('v_cmp'):
                self.wr = R[0]; self.rd = U(R[1:])
            elif op.startswith('v_permlane') and 'swap' in op:
                self.wr = R[0] | R[1]; self.rd = R[0] | R[1]
            elif op.startswith('v_add_co') or op.startswith('v_addc_co'):
                self.wr = R[0] | R[1]; self.rd = U(R[2:])
            else:
                self.wr = R[0]; self.rd = U(R[1:])
                if op.startswith('v_fmac') or op.startswith('v_dot2c') or op.startswith('v_writelane'):
                    self.rd |= R[0]
                if op.startswith('v_cndmask') and len(ops) == 3:
                    self.rd |= {('s', 'vcc')}
                if 'dpp' in op or 'row_' in mods or 'quad_perm' in mods:
                    self.rd |= R[0]
        elif op.startswith('s_'):
            self.kind = 'salu'
            if op in ('s_waitcnt', 's_nop', 's_barrier', 's_endpgm', 's_sleep', 's_setprio', 's_branch') or op.startswith('s_cbranch'):
                pass
            elif op.startswith('s_cmp'):
                self.rd = U(R)
            elif op.startswith('s_and_saveexec'):
                self.wr = R[0] | {('s', 'exec')}; self.rd = U(R[1:])
            else:
                self.wr = R[0]; self.rd = U(R[1:])
        else:
            raise ValueError('unknown instr ' + t)
    def cost(self):
        if self.kind in ('label',): return 0
        if self.kind == 'wait': return 4
        if self.kind == 'valu' and self.op.startswith(TRANS): return 8
        if self.kind == 'vmem': return VMEM_COST[0]
        return 4
    def size(self):
        return None

def W(*tokens):
    toks = []
    for t in tokens:
        if isinstance(t, (list, tuple)): toks.extend(t)
        else: toks.append(t)
    return I('<wait>', waits=toks)

class State:
    def __init__(self):
        self.vm_issued = 0; self.vm_done = 0
        self.lg_issued = 0; self.lg_done = 0
        self.pend = {}
        self.hist = []
    def copy(self):
        s = State(); s.__dict__.update(self.__dict__); s.pend = dict(self.pend); s.hist = list(self.hist)
        return s

def _need(prev, cur):
    n = 0
    vr = lambda S: {r for r in S if r[0] in 'va'}
    sr = lambda S: {r for r in S if r[0] == 's'}
    if prev.kind == 'mfma':
        p = prev.passes
        idx = {2: 0, 4: 1, 8: 2}[p]
        D = prev.wr
        if cur.kind == 'mfma':
            if D & (cur.a | cur.b): n = max(n, (5, 8, 12)[idx])
            if D & cur.c:
                if cur.c == D and cur.passes == p: n = max(n, (2, 0, 0)[idx])
                else: n = max(n, (4, 6, 10)[idx])
            elif D & cur.wr:
                n = max(n, (4, 6, 10)[idx])
        elif cur.kind in ('valu', 'vmem', 'lds'):
            if D & (cur.rd | cur.wr): n = max(n, (5, 8, 12)[idx])
            if cur.kind == 'valu' and (prev.c & cur.wr): n = max(n, (1, 3, 7)[idx])
    if prev.kind == 'valu':
        pw = prev.wr
        if cur.kind == 'mfma' and vr(pw) & cur.rd: n = max(n, 2)
        if cur.kind == 'mfma' and ('s', 'exec') in pw: n = max(n, 4)
        if cur.kind == 'valu':
            if prev.op.startswith(TRANS) and not cur.op.startswith(TRANS) and vr(pw) & cur.rd: n = max(n, 1)
            if prev.op.startswith(TRANS) and vr(pw) & cur.rd: n = max(n, 1)
            if sr(pw) & cur.rd: n = max(n, 2)
            if (cur.op.startswith('v_readfirstlane') or cur.op.startswith('v_readlane')) and vr(pw) & cur.rd: n = max(n, 1)
            if (cur.op.startswith('v_readlane') or cur.op.startswith('v_writelane')) and sr(pw) & cur.rd: n = max(n, 4)
            if cur.op.startswith('v_permlane') and vr(pw) & cur.rd: n = max(n, 2)
            if ('dpp' in cur.op or 'row_' in cur.mods or 'quad_perm' in cur.mods) and vr(pw) & cur.rd: n = max(n, 2)
            if 'sdwa' in prev.op and vr(pw) & (cur.rd | cur.wr): n = max(n, 1)
            if prev.op.startswith('v_dot') and vr(pw) & (cur.rd | cur.wr) and cur.op != prev.op: n = max(n, 3)
        if cur.kind == 'vmem' and sr(pw) & cur.rd: n = max(n, 5)
        if cur.kind in ('salu', 'smem') and sr(pw) & cur.rd: n = max(n, 2)
    if prev.kind == 'salu':
        if ('s', 'm0') in prev.wr and cur.kind == 'vmem' and getattr(cur, 'dma', False): n = max(n, 1)
    if prev.kind == 'vmem' and prev.store and len(prev.sdata) >= 3:
        if cur.kind in ('valu', 'mfma') and prev.sdata & cur.wr: n = max(n, 2)
        elif prev.sdata & cur.wr: n = max(n, 1)
    return n

def finalize(ins, st, out, stats=None):
    def emit(i, states=1):
        out.append(i)
        st.hist.append((i, states))
        if len(st.hist) > 24: st.hist.pop(0)
    def do_wait(vseq, lseq):
        parts = []
        if vseq > st.vm_done:
            n = min(st.vm_issued - vseq, 63)
            parts.append(f'vmcnt({n})'); st.vm_done = st.vm_issued - n
        if lseq > st.lg_done:
            n = min(st.lg_issued - lseq, 15)
            parts.append(f'lgkmcnt({n})'); st.lg_done = st.lg_issued - n
        if parts:
            emit(I('s_waitcnt ' + ' '.join(parts)))
            if stats is not None: stats['waits'] = stats.get('waits', 0) + 1
    for i in ins:
        if i.kind == 'label':
            out.append(i); continue
        if i.kind == 'wait':
            vs = ls = 0
            for t in i.waits:
                assert hasattr(t, 'seq'), f'wait on un-issued op {t.text}'
                if t.kind == 'vmem': vs = max(vs, t.seq + 1)
                else: ls = max(ls, t.seq + 1)
            do_wait(vs, ls); continue
        if i.kind == 'salu' and i.op == 's_waitcnt':
            m = re.search(r'vmcnt\((\d+)\)', i.text)
            if m: st.vm_done = max(st.vm_done, st.vm_issued - int(m.group(1)))
            m = re.search(r'lgkmcnt\((\d+)\)', i.text)
            if m: st.lg_done = max(st.lg_done, st.lg_issued - int(m.group(1)))
            if m and int(m.group(1)) == 0:
                for r in [r for r, v in st.pend.items() if v[0] == 'smem']: del st.pend[r]
            emit(i); continue
        vs = ls = 0
        for r in (i.rd | i.wr):
            p = st.pend.get(r)
            if p:
                if p[0] == 'vmem': vs = max(vs, p[1] + 1)
                elif p[0] == 'lds': ls = max(ls, p[1] + 1)
                else: raise AssertionError(f'use of SMEM result without lgkmcnt(0): {i.text}')
        do_wait(vs, ls)
        for r in list(i.rd | i.wr):
            if r in st.pend: del st.pend[r]
        dist = 0; need = 0
        for (p, states) in reversed(st.hist):
            n = _need(p, i)
            if n - dist > need: need = n - dist
            dist += states
            if dist > 20: break
        if need > 0:
            emit(I(f's_nop {need - 1}'), need)
            if stats is not None: stats['nops'] = stats.get('nops', 0) + need
        if i.kind == 'vmem':
            i.seq = st.vm_issued; st.vm_issued += 1
            for r in i.wr: st.pend[r] = ('vmem', i.seq)
        elif i.kind == 'lds':
            i.seq = st.lg_issued; st.lg_issued += 1
            for r in i.wr: st.pend[r] = ('lds', i.seq)
        elif i.kind == 'smem':
            if not i.op.startswith('s_mem'):
                for r in i.wr: st.pend[r] = ('smem', 0)
        states = 1
        if i.kind == 'salu' and i.op == 's_nop': states = int(i.ops[0]) + 1
        emit(i, states)
    return st

class Stream:
    def __init__(self):
        self.m = []
        self.pre = []
        self.queues = []
    def add(self, mf):
        self.m.append(mf); self.pre.append([]); return len(self.m) - 1
    def pin(self, gap, *ins):
        assert 0 <= gap < len(self.m), gap
        self.pre[gap].extend(ins)
    def queue(self, items, start, deadline=None, name='', rate=None):
        self.queues.append(dict(items=list(items), start=start, deadline=deadline, name=name, pos=0, rate=rate))
    def schedule(self, budget=None):
        out = []
        n = len(self.m)
        over = 0
        for g in range(n):
            mf = self.m[g]
            out.append(mf)
            bud = (mf.passes * 4 - 8) if budget is None else budget(g, mf)
            used = 0
            for i in self.pre[g]:
                out.append(i); used += i.cost()
            for q in self.queues:
                if g < q['start']: continue
                rem = len(q['items']) - q['pos']
                if rem == 0: continue
                forced = 0
                if q['deadline'] is not None:
                    left = q['deadline'] - g + 1
                    assert left >= 1, f"queue {q['name']} missed deadline"
                    forced = -(-rem // left) if left <= rem else 0
                    if left == 1: forced = rem
                cnt = 0
                while q['pos'] < len(q['items']):
                    it = q['items'][q['pos']]
                    if cnt >= forced and used + min(it.cost(), 8) > bud: break
                    if q['rate'] is not None and cnt >= max(q['rate'], forced): break
                    out.append(it); used += it.cost(); q['pos'] += 1; cnt += 1
                    if q['pos'] == len(q['items']): q['done_gap'] = g
            if used > bud: over += used - bud
        for q in self.queues:
            rem = q['items'][q['pos']:]
            if rem:
                out.extend(rem); q['done_gap'] = n
                over += sum(i.cost() for i in rem)
        self.over = over
        return out
```

```python
import sys, math, struct, os
from asmfw import *

KNAME = "parallel_sum__ssm_conv_s5__geglu_ffn__prompt_kernel"
OPT = dict(stamps=0, warm=1, nt=0)
for a in sys.argv[2:]:
    k, v = a.split('='); OPT[k] = int(v)

def f32(x): return "0x%08x" % struct.unpack('<I', struct.pack('<f', x))[0]

RING = 0; NSLOT = 4; XST = 65536; NX = 5; SMALL = 147456
STAT = SMALL; CSX = SMALL + 1024; PL = SMALL + 5120; PA = PL + 2048; PH = PA + 8192
SCX = 90112 + 4096
XS4 = 4 * 4096
LDS_BYTES = 163840
assert PH + 1024 <= LDS_BYTES
RED_STRIDE = 21504
WS_A2 = 0; A2_STEP = 131072; WS_B2 = 96 * A2_STEP; B2_STEP = 40960
WS_FLG = WS_B2 + 96 * B2_STEP; WS_E = 4096; WS_TS = 131072
OOB = 0x7F000000

S_X, S_W, S_A2, S_B2, S_F, S_DBG, S_OUT, S_P0, S_P1, S_E = 40, 44, 48, 52, 56, 60, 64, 68, 72, 76
sRB, sCG, sWV, sT0, sT1, sT2, sT3 = 80, 81, 82, 83, 84, 85, 86
sXO, sWO, sM0X, sM0W = 87, 88, 89, 90
sSO = [91, 92, 93, 94]
sMASK = 96
sA2O, sB2O, sTMO, sFLO = 98, 99, 100, 101
sCOL = [3, 4, 5]
sW0 = 6
sG = 7
P_X, P_LRE, P_LIM, P_BRE, P_BIM, P_CRE, P_CIM, P_LDT, P_DSK, P_BX, P_WG, P_WU, P_WD, P_OUT, P_DBG, P_WS = [8 + 2 * i for i in range(16)]
STAMP_REGS = [8, 14, 16, 18, 20, 26, 28, 30, 32, 34, 36, 38]

def srd(base): return f"s[{base}:{base+3}]"
def v(i, n=1): return f"v{i}" if n == 1 else f"v[{i}:{i+n-1}]"
def a(i, n=1): return f"a{i}" if n == 1 else f"a[{i}:{i+n-1}]"

class B:
    def __init__(self): self.l = []
    def __call__(self, text):
        i = I(text); self.l.append(i); return i
    def add(self, *ins):
        for i in ins:
            if isinstance(i, (list, tuple)): self.l.extend(i)
            else: self.l.append(i)
    def srd(self, dst, ptr, nbytes, off=0):
        if off:
            self(f"s_add_u32 s{dst}, s{ptr}, {off}"); self(f"s_addc_u32 s{dst+1}, s{ptr+1}, 0")
            self(f"s_and_b32 s{dst+1}, s{dst+1}, 0xffff")
        else:
            self(f"s_mov_b32 s{dst}, s{ptr}"); self(f"s_and_b32 s{dst+1}, s{ptr+1}, 0xffff")
        self(f"s_mov_b32 s{dst+2}, {nbytes}"); self(f"s_mov_b32 s{dst+3}, 0x20000")

stamp_n = [0]
def stamp(b, k):
    if OPT['stamps']:
        r = STAMP_REGS[k]
        b(f"s_memtime s[{r}:{r+1}]")

NT = " nt" if OPT['nt'] else ""

vLANE, vT0, vT1, vT2, vT3 = 1, 2, 3, 4, 5
vXD = 6
vXR = 10
vWD = 14
vWR = 18
vWD2 = 26
vWR2 = 30
vST = 34
vL16 = 35
vSUM = 36
vSQ = 40
vCS = 44
vSEL = 60
vFR = 64
NF = 5; LA = 3
vFLG, vFLO = 84, 85
vK1, vK2, vKC = 86, 87, 88
vXM = 92
vQ = 100
vE = 104
vACC = 128

slow_paths = []
poll_id = [0]

def poll_issue(b, srdbase, voff, size="dword"):
    return b(f"buffer_load_{size} v{vFLG}, v{voff}, {srd(srdbase)}, 0 offen sc1")

def poll_check(b, srdbase, voff, checker):
    k = poll_id[0]; poll_id[0] += 1
    checker(b)
    b(f"s_cbranch_scc1 L_slow{k}")
    b(f"L_back{k}:")
    sp = B()
    sp(f"L_slow{k}:")
    sp("s_sleep 2")
    sp(f"buffer_load_dword v{vFLG}, v{voff}, {srd(srdbase)}, 0 offen sc1")
    sp("s_waitcnt vmcnt(0)")
    sp(f"s_sub_u32 s{sTMO}, s{sTMO}, 1")
    sp(f"s_cbranch_scc1 L_back{k}")
    checker(sp)
    sp(f"s_cbranch_scc1 L_slow{k}")
    sp(f"s_branch L_back{k}")
    slow_paths.append(sp)

def chk_dbg(bb):
    bb(f"v_add_u32 v{vT0}, 0xfefefeff, v{vFLG}")
    bb(f"v_not_b32 v{vT1}, v{vFLG}")
    bb(f"v_and_b32 v{vT0}, v{vT0}, v{vT1}")
    bb(f"v_and_b32 v{vT0}, 0x80808080, v{vT0}")
    bb(f"v_cmp_ne_u32 vcc, 0, v{vT0}")
    bb("s_cmp_lg_u64 vcc, 0")

def chk_flag(level, which):
    def f(bb):
        bb(f"v_cmp_gt_u32 vcc, {level}, v{vFLG}")
        if which == 'ffn': bb(f"s_and_b64 vcc, vcc, s[{sMASK}:{sMASK+1}]")
        elif which == 'ssm': bb(f"s_andn2_b64 vcc, vcc, s[{sMASK}:{sMASK+1}]")
        else: bb("s_cmp_lg_u64 vcc, 0")
    return f

def prologue():
    b = B()
    b("s_cmp_ge_u32 s2, 256")
    b("s_cbranch_scc1 L_end")
    b("s_load_dwordx16 s[8:23], s[0:1], 0")
    b("s_load_dwordx16 s[24:39], s[0:1], 64")
    b(f"v_and_b32 v{vLANE}, 63, v0")
    b(f"v_lshrrev_b32 v{vT0}, 6, v0")
    b(f"v_lshlrev_b32 v{vL16}, 4, v{vLANE}")
    b(f"v_readfirstlane_b32 s{sWV}, v{vT0}")
    if OPT['warm']:
        b(f"s_getpc_b64 s[{sT0+1}:{sT0+2}]")
        b("L_pc0:")
        b(f"s_lshr_b32 s{sT0}, s2, 3")
        b(f"s_min_u32 s{sT0}, s{sT0}, NPAGES_M1")
        b(f"s_lshl_b32 s{sT0}, s{sT0}, 12")
        b(f"v_lshlrev_b32 v{vT1}, 4, v0")
        b(f"v_add_u32 v{vT1}, s{sT0}, v{vT1}")
        b(f"global_load_dwordx4 v[252:255], v{vT1}, s[{sT0+1}:{sT0+2}]")
    b(f"s_and_b32 s{sRB}, s2, 1"); b(f"s_lshl_b32 s{sRB}, s{sRB}, 3")
    b(f"s_lshr_b32 s{sT0}, s2, 3"); b(f"s_and_b32 s{sT3}, s{sT0}, 7"); b(f"s_add_u32 s{sRB}, s{sRB}, s{sT3}")
    b(f"s_lshr_b32 s{sT0}, s{sT0}, 3")
    b(f"s_and_b32 s{sCG}, s2, 6"); b(f"s_lshl_b32 s{sCG}, s{sCG}, 1"); b(f"s_add_u32 s{sCG}, s{sCG}, s{sT0}")
    b(f"s_mov_b32 s{sTMO}, 200000")
    b(f"s_cmp_eq_u32 s{sWV}, 3"); b(f"s_cselect_b32 s{sW0}, 0, {OOB}")
    b(f"s_mul_i32 s{sM0X}, s{sWV}, {NX*4096}"); b(f"s_add_u32 s{sM0X}, s{sM0X}, {XST}")
    b(f"s_lshl_b32 s{sM0W}, s{sWV}, 12")
    b(f"s_lshl_b32 s{sXO}, s{sRB}, 2"); b(f"s_add_u32 s{sXO}, s{sXO}, s{sWV}"); b(f"s_mul_i32 s{sXO}, s{sXO}, 40960")
    b(f"v_and_b32 v{vT0}, 7, v{vLANE}")
    b(f"v_lshrrev_b32 v{vT1}, 4, v{vLANE}")
    b(f"v_xor_b32 v{vT0}, v{vT0}, v{vT1}")
    b(f"v_lshlrev_b32 v{vT0}, 4, v{vT0}")
    b(f"v_xor_b32 v{vT1}, 64, v{vT0}")
    b(f"v_lshrrev_b32 v{vT2}, 3, v{vLANE}")
    b(f"v_and_b32 v{vST}, 15, v{vLANE}"); b(f"v_lshlrev_b32 v{vST}, 4, v{vST}")
    b(f"v_bfe_u32 v{vT3}, v{vLANE}, 4, 1"); b(f"v_lshl_add_u32 v{vST}, v{vT3}, 10, v{vST}")
    b(f"v_lshrrev_b32 v{vT3}, 5, v{vLANE}"); b(f"v_lshl_add_u32 v{vST}, v{vT3}, 8, v{vST}")
    b(f"s_lshl_b32 s{sT0}, s{sRB}, 2"); b(f"s_add_u32 s{sT0}, s{sT0}, s{sWV}"); b(f"s_lshl_b32 s{sT3}, s{sT0}, 11")
    b(f"v_add_u32 v{vST}, s{sT3}, v{vST}")
    b(f"s_lshr_b32 s{sT0}, s{sT0}, 1"); b(f"s_lshl_b32 s{sFLO}, s{sT0}, 7")
    b(f"s_and_b32 s{sT0}, s{sWV}, 1"); b(f"s_lshl_b32 s{sT3}, s{sCG}, 1"); b(f"s_add_u32 s{sT0}, s{sT0}, s{sT3}")
    b(f"s_lshl_b32 s{sT0}, s{sT0}, 2"); b(f"s_add_u32 s{sFLO}, s{sFLO}, s{sT0}")
    b("s_waitcnt lgkmcnt(0)")
    b.srd(S_X, P_X, 2621440)
    b(f"s_cmp_ge_u32 s{sCG}, 11")
    b("s_cbranch_scc1 L_ssm")
    return b

def common_srds(b):
    b.srd(S_A2, P_WS, 94 * A2_STEP)
    b.srd(S_B2, P_WS, 94 * B2_STEP, WS_B2)
    b.srd(S_F, P_WS, 262144, WS_FLG)
    b.srd(S_DBG, P_DBG, 256)
    b.srd(S_OUT, P_OUT, 2048 * 640 * 4)

def x_dma(c):
    b = B()
    b(f"s_add_u32 m0, s{sM0X}, {(c % NX) * 4096}")
    toks = []
    for i in range(4):
        toks.append(b(f"buffer_load_dwordx4 v{vXD+i}, {srd(S_X)}, s{sXO} offen offset:{1024*i}{NT} lds"))
    b(f"s_add_u32 s{sXO}, s{sXO}, 128")
    return b.l, toks

def w_dma(cc, vbase, step, newoff=None):
    b = B()
    if newoff is not None: b(f"s_mov_b32 s{sWO}, s{newoff}")
    b(f"s_add_u32 m0, s{sM0W}, {RING + (cc % NSLOT) * 16384}")
    toks = []
    for i in range(4):
        toks.append(b(f"buffer_load_dwordx4 v{vbase+i}, {srd(S_W)}, s{sWO} offen offset:{1024*i}{NT} lds"))
    b(f"s_add_u32 s{sWO}, s{sWO}, {step}")
    return b.l, toks

def frag_addr_setup(b, krot_expr_bits):
    b(f"v_and_b32 v{vT3}, 31, v{vLANE}"); b(f"v_lshlrev_b32 v{vT3}, 7, v{vT3}")
    b(f"v_bfe_u32 v{vE}, v{vLANE}, 1, 3")
    b(f"v_lshrrev_b32 v{vE+1}, 5, v{vLANE}")
    b(f"v_xor_b32 v{vE}, v{vE}, v{vE+1}")
    b(f"s_lshl_b32 s{sT0}, s{sT0}, 1")
    b(f"v_xor_b32 v{vE}, s{sT0}, v{vE}")
    for k in range(4):
        b(f"v_xor_b32 v{vE+1}, {2*k}, v{vE}")
        b(f"v_lshl_add_u32 v{vXR+k}, v{vE+1}, 4, v{vT3}")

def sel_setup(b):
    b(f"v_lshrrev_b32 v{vE}, 2, v{vLANE}"); b(f"v_lshrrev_b32 v{vE+1}, 4, v{vLANE}")
    b(f"v_xor_b32 v{vE}, v{vE}, v{vE+1}"); b(f"v_and_b32 v{vE}, 1, v{vE}")
    b(f"v_cmp_eq_u32 vcc, 0, v{vE}")
    b(f"v_mov_b32 v{vE+1}, 0x3f803f80")
    b(f"v_cndmask_b32 v{vSEL}, 0, v{vE+1}, vcc")
    for i in range(1, 4): b(f"v_mov_b32 v{vSEL+i}, v{vSEL}")

def flag_setup(b):
    b(f"v_and_b32 v{vFLO}, 31, v{vLANE}")
    b(f"v_cmp_gt_u32 s[{sMASK}:{sMASK+1}], 22, v{vFLO}")
    b(f"v_lshlrev_b32 v{vFLO}, 2, v{vFLO}")
    b(f"s_lshl_b32 s{sT0}, s{sRB}, 1"); b(f"s_lshr_b32 s{sT1}, s{sCG}, 3"); b(f"s_add_u32 s{sT0}, s{sT0}, s{sT1}")
    b(f"s_lshl_b32 s{sA2O}, s{sT0}, 12")
    b(f"s_lshl_b32 s{sT0}, s{sT0}, 7")
    b(f"v_add_u32 v{vFLO}, s{sT0}, v{vFLO}")
    b(f"s_lshl_b32 s{sT0}, s{sWV}, 17"); b(f"s_add_u32 s{sA2O}, s{sA2O}, s{sT0}")
    b(f"s_and_b32 s{sT0}, s{sCG}, 7"); b(f"s_mul_i32 s{sB2O}, s{sT0}, 5120")
    b(f"s_mul_i32 s{sT0}, s{sWV}, {B2_STEP}"); b(f"s_add_u32 s{sB2O}, s{sB2O}, s{sT0}")

def flag_store(level, tmp):
    b = B()
    b(f"v_mov_b32 v{tmp}, {level}")
    b(f"buffer_store_dword v{tmp}, off, {srd(S_F)}, s{sFLO} sc1")
    return b.l

def dbg_flag_store(tmp):
    b = B()
    b(f"s_lshl_b32 s{sT0}, s{sRB}, 4"); b(f"s_add_u32 s{sT0}, s{sT0}, s{sCG}"); b(f"s_add_u32 s{sT0}, s{sT0}, s{sW0}")
    b(f"v_mov_b32 v{tmp}, 1")
    b(f"buffer_store_byte v{tmp}, off, {srd(S_DBG)}, s{sT0} sc1")
    return b.l

def bf16_round(b, dst, src):
    b(f"v_cvt_pk_bf16_f32 v{dst}, v{src}, v{src}")
    b(f"v_and_b32 v{dst}, 0xffff0000, v{dst}")

def stats_final(time_of_row):
    b = B()
    t = vE + 4
    b(f"v_and_b32 v{t}, 3, v{vLANE}")
    b(f"v_cmp_eq_u32 vcc, 1, v{t}")
    b(f"v_cndmask_b32 v{vSQ}, v{vSQ}, v{vSQ+1}, vcc")
    b(f"v_cmp_eq_u32 vcc, 2, v{t}")
    b(f"v_cndmask_b32 v{vSQ}, v{vSQ}, v{vSQ+2}, vcc")
    b(f"v_cmp_eq_u32 vcc, 3, v{t}")
    b(f"v_cndmask_b32 v{vSQ}, v{vSQ}, v{vSQ+3}, vcc")
    b(f"v_mov_b32 v{vSQ+1}, v{vSQ}")
    b(f"v_mul_f32 v{vSUM}, {f32(1/640)}, v{vSUM}")
    b(f"v_permlane32_swap_b32 v{vSQ}, v{vSQ+1}")
    b(f"v_add_f32 v{vSQ}, v{vSQ}, v{vSQ+1}")
    b(f"v_mul_f32 v{vSQ}, {f32(1/640)}, v{vSQ}")
    b(f"v_fma_f32 v{vSQ}, -v{vSUM}, v{vSUM}, v{vSQ}")
    b(f"v_max_f32 v{vSQ}, 0, v{vSQ}")
    bf16_round(b, vSQ, vSQ)
    b(f"v_add_f32 v{vSQ}, {f32(1e-5)}, v{vSQ}")
    bf16_round(b, vSQ, vSQ)
    b(f"v_sqrt_f32 v{vSQ}, v{vSQ}")
    b(f"v_cvt_pk_bf16_f32 v{vE+3}, -v{vSUM}, -v{vSUM}")
    bf16_round(b, vE + 2, vSQ)
    b(f"v_rcp_f32 v{vE+1}, v{vE+2}")
    b(f"v_and_b32 v{vE}, 0xffff0000, v{vE+3}")
    b(f"v_xor_b32 v{vE}, 0x80000000, v{vE}")
    b(f"v_cmp_gt_u32 vcc, 32, v{vLANE}")
    b(f"v_cndmask_b32 v{vE+3}, 0, v{vE+3}, vcc")
    time_of_row(b, t)
    b(f"v_lshlrev_b32 v{t}, 3, v{t}")
    b(f"s_lshl_b32 s{sT1}, s{sWV}, 8"); b(f"s_add_u32 s{sT1}, s{sT1}, {STAT}")
    b(f"v_add_u32 v{t}, s{sT1}, v{t}")
    b(f"ds_write_b64 v{t}, v[{vE}:{vE+1}]")
    return b.l

def cs_pack(b, dst, src, tmp):
    b(f"v_cvt_pk_bf16_f32 v{tmp}, v{src}, v{src}")
    b(f"v_and_b32 v{tmp}, 0xffff0000, v{tmp}")
    b(f"v_sub_f32 v{dst}, v{src}, v{tmp}")
    b(f"v_cvt_pk_bf16_f32 v{dst}, v{tmp}, v{dst}")

def phase2(b):
    vOUT, vLD, vBASE = 6, 11, 96
    vL16b = 36
    vX = 40
    ACC = 128
    stamp(b, 6)
    b(f"v_add_u32 v{vL16b}, 4096, v{vL16}")
    b(f"s_lshl_b32 s{sT0}, s{sRB}, 1"); b(f"s_lshr_b32 s{sT1}, s{sCG}, 3"); b(f"s_add_u32 s{sT0}, s{sT0}, s{sT1}")
    b(f"s_mul_i32 s{sT0}, s{sT0}, {64*2560}")
    b(f"s_and_b32 s{sT2}, s{sCG}, 7"); b(f"s_mul_i32 s{sT2}, s{sT2}, 320"); b(f"s_add_u32 s{sT0}, s{sT0}, s{sT2}")
    b(f"s_lshr_b32 s{sT2}, s{sT2}, 1")
    b(f"s_lshl_b32 s{sT1}, s{sT1}, 9"); b(f"s_add_u32 s{sT1}, s{sT1}, {STAT}")
    b(f"s_mov_b32 s{sT3}, 2560")
    for it in range(5):
        e, row, ch = vX + 40, vX + 41, vX + 42
        b(f"v_add_u32 v{e}, {256*it}, v0")
        b(f"v_mul_u32_u24 v{row}, 3277, v{e}"); b(f"v_lshrrev_b32 v{row}, 16, v{row}")
        b(f"v_mul_u32_u24 v{ch}, 20, v{row}"); b(f"v_sub_u32 v{ch}, v{e}, v{ch}"); b(f"v_lshlrev_b32 v{ch}, 4, v{ch}")
        b(f"v_mad_u32_u24 v{vOUT+it}, v{row}, s{sT3}, v{ch}"); b(f"v_add_u32 v{vOUT+it}, s{sT0}, v{vOUT+it}")
        b(f"v_mul_u32_u24 v{vLD+it}, 336, v{row}"); b(f"v_add_u32 v{vLD+it}, v{vLD+it}, v{ch}")
        b(f"v_lshrrev_b32 v{e}, 1, v{vOUT+it}")
        b(f"buffer_load_dwordx2 v[{vX+2*it}:{vX+2*it+1}], v{e}, {srd(S_X)}, 0 offen")
        b(f"v_lshrrev_b32 v{ch}, 1, v{ch}"); b(f"v_add_u32 v{ch}, s{sT2}, v{ch}")
        b(f"global_load_dwordx2 v[{vX+10+2*it}:{vX+11+2*it}], v{ch}, s[{P_DSK}:{P_DSK+1}]")
        b(f"v_lshl_add_u32 v{row}, v{row}, 3, s{sT1}")
        b(f"ds_read_b64 v[{vX+20+2*it}:{vX+21+2*it}], v{row}")
    b(f"v_lshlrev_b32 v{vT2}, 2, v{vLANE}")
    poll_issue(b, S_DBG, vT2); poll_check(b, S_DBG, vT2, chk_dbg)
    poll_issue(b, S_F, vFLO); poll_check(b, S_F, vFLO, chk_flag(3, 'all'))
    stamp(b, 7)
    DEPTH = 6
    def loads(i):
        bb = B(); base = (i % DEPTH) * 36
        for mi in range(4):
            bb(f"buffer_load_dwordx4 {a(base+4*mi,4)}, v{vL16}, {srd(S_A2)}, s{sA2O} offen offset:{1024*mi} sc1")
        bb(f"s_add_u32 s{sA2O}, s{sA2O}, {4*A2_STEP}")
        for nj in range(5):
            bb(f"buffer_load_dwordx4 {a(base+16+4*nj,4)}, v{vL16 if nj < 4 else vL16b}, {srd(S_B2)}, s{sB2O} offen offset:{1024*(nj%4)} sc1")
        bb(f"s_add_u32 s{sB2O}, s{sB2O}, {4*B2_STEP}")
        return bb.l
    for i in range(DEPTH - 1): b.add(loads(i))
    for it in range(5):
        m, r = vX + 20 + 2*it, vX + 21 + 2*it
        for q in range(4):
            src = vX + 2*it + q // 2; dsrc = vX + 10 + 2*it + q // 2
            xv, t, d = vBASE + 4*it + q, vX + 40, vX + 41
            if q % 2 == 0:
                b(f"v_lshlrev_b32 v{xv}, 16, v{src}"); b(f"v_lshlrev_b32 v{d}, 16, v{dsrc}")
            else:
                b(f"v_and_b32 v{xv}, 0xffff0000, v{src}"); b(f"v_and_b32 v{d}, 0xffff0000, v{dsrc}")
            b(f"v_sub_f32 v{t}, v{xv}, v{m}"); bf16_round(b, t, t)
            b(f"v_mul_f32 v{t}, v{t}, v{r}"); bf16_round(b, t, t)
            b(f"v_mul_f32 v{t}, v{t}, v{d}"); bf16_round(b, t, t)
            b(f"v_add_f32 v{xv}, v{xv}, v{t}")
    st = Stream()
    for i in range(24):
        base = (i % DEPTH) * 36
        g0 = len(st.m)
        for nj in range(5):
            for mi in range(4):
                d = ACC + 4 * (mi * 5 + nj)
                c = "0" if i == 0 else v(d, 4)
                st.add(I(f"v_mfma_f32_16x16x32_bf16 {v(d,4)}, {a(base+16+4*nj,4)}, {a(base+4*mi,4)}, {c}"))
        if i + DEPTH - 1 < 24:
            ld = loads(i + DEPTH - 1)
            for k, ins in enumerate(ld): st.pin(g0 + min(19, (k * 20) // len(ld)), ins)
    b.add(st.schedule())
    stamp(b, 8)
    t = vX + 40
    b(f"v_and_b32 v{t}, 15, v{vLANE}"); b(f"v_mul_u32_u24 v{t}, 336, v{t}")
    b(f"v_lshrrev_b32 v{t+1}, 4, v{vLANE}"); b(f"v_lshl_add_u32 v{t}, v{t+1}, 4, v{t}")
    b(f"s_mul_i32 s{sT0}, s{sWV}, {RED_STRIDE}"); b(f"v_add_u32 v{t}, s{sT0}, v{t}")
    for mi in range(4):
        for nj in range(5):
            d = ACC + 4 * (mi * 5 + nj)
            b(f"ds_write_b128 v{t}, {v(d,4)} offset:{mi*16*336 + nj*64}")
    b("s_waitcnt lgkmcnt(0)")
    b("s_barrier")
    R = 128
    for it in range(5):
        for wv in range(4):
            b(f"ds_read_b128 {v(R+16*it+4*wv,4)}, v{vLD+it} offset:{wv*RED_STRIDE}")
    for it in range(5):
        r0 = R + 16 * it
        for h in range(2):
            b(f"v_pk_add_f32 v[{r0+2*h}:{r0+2*h+1}], v[{r0+2*h}:{r0+2*h+1}], v[{r0+4+2*h}:{r0+5+2*h}]")
            b(f"v_pk_add_f32 v[{r0+8+2*h}:{r0+9+2*h}], v[{r0+8+2*h}:{r0+9+2*h}], v[{r0+12+2*h}:{r0+13+2*h}]")
            b(f"v_pk_add_f32 v[{r0+2*h}:{r0+2*h+1}], v[{r0+2*h}:{r0+2*h+1}], v[{vBASE+4*it+2*h}:{vBASE+4*it+2*h+1}]")
            b(f"v_pk_add_f32 v[{r0+2*h}:{r0+2*h+1}], v[{r0+2*h}:{r0+2*h+1}], v[{r0+8+2*h}:{r0+9+2*h}]")
        b(f"buffer_store_dwordx4 {v(r0,4)}, v{vOUT+it}, {srd(S_OUT)}, 0 offen")
    if OPT['stamps']:
        b("s_waitcnt vmcnt(0)")
        stamp(b, 9)
        b("s_waitcnt lgkmcnt(0)")
        b(f"s_lshl_b32 s{sT0}, s2, 2"); b(f"s_add_u32 s{sT0}, s{sT0}, s{sWV}"); b(f"s_lshl_b32 s{sT0}, s{sT0}, 6")
        b(f"s_add_u32 s{sT0}, s{sT0}, {WS_TS}")
        for k, r in enumerate(STAMP_REGS):
            b(f"v_mov_b32 v{vT0}, s{r}")
            b(f"buffer_store_dword v{vT0}, off, {srd(S_F)}, s{sT0} offset:{4*k}")
    b("s_endpgm")

GK1 = -2.0 * math.sqrt(2.0 / math.pi) * math.log2(math.e)
GK2 = GK1 * 0.044715

def ffn_epilogue(acc, so, tmp):
    b = B()
    for p in range(0, 8, 2):
        g = [acc + p, acc + p + 1]; u = [acc + 8 + p, acc + 9 + p]
        t = [tmp + 4 + (p % 4), tmp + 5 + (p % 4)]
        for k in range(2): b(f"v_mul_f32 v{t[k]}, v{g[k]}, v{g[k]}")
        for k in range(2): b(f"v_fma_f32 v{t[k]}, v{t[k]}, v{vK2}, v{vK1}")
        for k in range(2): b(f"v_mul_f32 v{t[k]}, v{g[k]}, v{t[k]}")
        for k in range(2): b(f"v_exp_f32 v{t[k]}, v{t[k]}")
        for k in range(2): b(f"v_mul_f32 v{u[k]}, v{g[k]}, v{u[k]}")
        for k in range(2): b(f"v_fma_f32 v{t[k]}, v{t[k]}, v{vKC}, v{vKC}")
        for k in range(2): b(f"v_rcp_f32 v{t[k]}, v{t[k]}")
        b(f"v_mul_f32 v{u[0]}, v{u[0]}, v{t[0]}")
        b(f"v_mul_f32 v{u[1]}, v{u[1]}, v{t[1]}")
        b(f"v_cvt_pk_bf16_f32 v{tmp + p//2}, v{u[0]}, v{u[1]}")
    tok = b(f"buffer_store_dwordx4 {v(tmp,4)}, v{vST}, {srd(S_A2)}, s{so} offen sc1")
    return b.l, tok

def ffn_path():
    b = B()
    stamp(b, 0)
    b(f"v_mul_u32_u24 v{vT3}, 1280, v{vT2}")
    for i in range(4):
        b(f"v_add_u32 v{vXD+i}, v{vT3}, v{vT0 if i % 2 == 0 else vT1}")
        if i: b(f"v_add_u32 v{vXD+i}, {i*(10240-1024)}, v{vXD+i}")
    xi, xt = {}, {}
    xi[0], xt[0] = x_dma(0); b.add(xi[0])
    b(f"s_cmp_ge_u32 s{sWV}, 2")
    b(f"s_cselect_b32 s{S_W}, s{P_WU}, s{P_WG}"); b(f"s_cselect_b32 s{S_W+1}, s{P_WU+1}, s{P_WG+1}")
    b(f"s_and_b32 s{S_W+1}, s{S_W+1}, 0xffff"); b(f"s_mov_b32 s{S_W+2}, {640*3456}"); b(f"s_mov_b32 s{S_W+3}, 0x20000")
    b(f"s_mul_i32 s{sT0}, s{sCG}, 320"); b(f"s_and_b32 s{sT1}, s{sCG}, 1"); b(f"s_lshl_b32 s{sT2}, s{sT1}, 6")
    b(f"s_add_u32 s{sCOL[0]}, s{sT0}, s{sT2}"); b(f"s_add_u32 s{sCOL[1]}, s{sCOL[0]}, 128")
    b(f"s_xor_b32 s{sT1}, s{sT1}, 1"); b(f"s_lshl_b32 s{sT1}, s{sT1}, 8"); b(f"s_add_u32 s{sCOL[2]}, s{sT0}, s{sT1}")
    b(f"s_lshr_b32 s{sT0}, s{sWV}, 1")
    b(f"s_lshl_b32 s{sT1}, s{sT0}, 2")
    b(f"v_bfe_u32 v{vE}, v{vLANE}, 4, 1"); b(f"v_lshlrev_b32 v{vE}, 1, v{vE}"); b(f"v_or_b32 v{vE}, s{sT1}, v{vE}")
    b(f"v_and_b32 v{vE+1}, 7, v{vLANE}"); b(f"v_xor_b32 v{vE}, v{vE}, v{vE+1}"); b(f"v_lshlrev_b32 v{vE}, 4, v{vE}")
    b(f"v_mul_u32_u24 v{vE+1}, 3456, v{vT2}"); b(f"v_add_u32 v{vE}, v{vE}, v{vE+1}")
    b(f"s_and_b32 s{sT2}, s{sWV}, 1"); b(f"s_mul_i32 s{sT3}, s{sT2}, {32*3456}")
    b(f"v_add_u32 v{vWD}, s{sT3}, v{vE}")
    for i in range(1, 4): b(f"v_add_u32 v{vWD+i}, {i*(8*3456-1024)}, v{vWD}")
    wi, wt = {}, {}
    CH = []
    for sb in range(3):
        for c in range(10 if sb < 2 else 5): CH.append((sb, c))
    for cc, (sb, c) in enumerate(CH):
        wi[cc], wt[cc] = w_dma(cc, vWD if sb < 2 else vWD2, 64 * 3456 if sb < 2 else 128 * 3456, sCOL[sb] if c == 0 else None)
    for c in range(1, 10): xi[c], xt[c] = x_dma(c)
    b.add(wi[0])
    common_srds(b)
    b.srd(S_P0, P_WD, 1728 * 1280)
    b(f"s_lshl_b32 s{sT0}, s{sRB}, 2"); b(f"s_add_u32 s{sT0}, s{sT0}, s{sWV}")
    b(f"s_mul_i32 s{sT1}, s{sT0}, 205"); b(f"s_lshr_b32 s{sT1}, s{sT1}, 11")
    b(f"s_mul_i32 s{sT2}, s{sT1}, 10"); b(f"s_sub_u32 s{sT0}, s{sT0}, s{sT2}")
    b(f"s_lshl_b32 s{sT2}, s{sT1}, 6"); b(f"s_add_u32 s{sT2}, s{sT2}, s{sCOL[0]}")
    b(f"s_cmp_eq_u32 s{sT1}, 4"); b(f"s_cselect_b32 s{sT2}, s{sCOL[2]}, s{sT2}")
    b(f"s_mul_i32 s{sT2}, s{sT2}, 640")
    b(f"s_lshl_b32 s{sT3}, s{sT0}, 7"); b(f"s_add_u32 s{sT2}, s{sT2}, s{sT3}")
    b(f"s_lshl_b32 s{sT3}, s{sCG}, 1"); b(f"s_add_u32 s{sT3}, s{sT3}, s{sT1}")
    b(f"s_cmp_ge_u32 s{sT1}, 2"); b(f"s_cselect_b32 s{sSO[0]}, 20, 0"); b(f"s_add_u32 s{sT3}, s{sT3}, s{sSO[0]}")
    b(f"s_add_u32 s{sSO[0]}, s{sCG}, 44")
    b(f"s_cmp_eq_u32 s{sT1}, 4"); b(f"s_cselect_b32 s{sT3}, s{sSO[0]}, s{sT3}")
    b(f"s_mul_i32 s{sT3}, s{sT3}, {B2_STEP}"); b(f"s_lshl_b32 s{sT0}, s{sT0}, 12"); b(f"s_add_u32 s{sT3}, s{sT3}, s{sT0}")
    b(f"s_cmp_eq_u32 s{sCG}, 10"); b(f"s_addc_u32 s{sT1}, s{sT1}, 0")
    b(f"s_cmp_gt_u32 s{sT1}, 4"); b(f"s_cselect_b32 s{sT2}, {OOB}, s{sT2}"); b(f"s_cselect_b32 s{sG}, {OOB}, s{sT3}")
    b(f"v_and_b32 v{vE}, 7, v{vLANE}"); b(f"v_lshl_add_u32 v{vE}, v{vE}, 4, v{vT3}")
    b(f"s_add_u32 m0, s{sM0X}, {4*4096}")
    pre_ld = []
    for i in range(4):
        pre_ld.append(b(f"buffer_load_dwordx4 v{vE}, {srd(S_P0)}, s{sT2} offen offset:{1024*i} lds"))
        if i < 3: b(f"v_add_u32 v{vE}, {10240-1024}, v{vE}")
    for c in range(1, 4):
        b.add(xi[c]); b.add(wi[c])
    pre_st = []
    l = flag_store(0, vE + 1); b.add(l); pre_st.append(l[-1])
    b(f"s_lshr_b32 s{sT0}, s{sWV}, 1")
    frag_addr_setup(b, None)
    for k in range(4): b(f"v_add_u32 v{vXR+k}, s{sM0X}, v{vXR+k}")
    mat, hh, r0, pc = vE, vE + 1, vE + 2, vE + 3
    b(f"v_bfe_u32 v{mat}, v{vLANE}, 4, 1"); b(f"v_lshrrev_b32 v{hh}, 5, v{vLANE}"); b(f"v_bfe_u32 v{r0}, v{vLANE}, 2, 2")
    b(f"v_and_b32 v{pc}, 1, v{vLANE}"); b(f"v_lshlrev_b32 v{pc}, 4, v{pc}")
    b(f"v_bfe_u32 v{vE+4}, v{vLANE}, 1, 1"); b(f"v_lshl_add_u32 v{pc}, v{vE+4}, 3, v{pc}")
    b(f"v_lshl_add_u32 v{pc}, v{mat}, 13, v{pc}")
    b(f"v_lshl_add_u32 v{hh}, v{hh}, 3, v{r0}")
    b(f"v_lshrrev_b32 v{r0}, 1, v{r0}"); b(f"v_lshl_add_u32 v{r0}, v{mat}, 1, v{r0}")
    b(f"v_lshl_add_u32 v{vE+4}, v{hh}, 7, v{pc}")
    b(f"v_lshl_add_u32 v{vE+5}, v{hh}, 6, v{pc}")
    b(f"s_lshr_b32 s{sT1}, s{sWV}, 1")
    for j in range(4):
        b(f"s_add_u32 s{sT0}, s{sWV}, {j}"); b(f"s_and_b32 s{sT0}, s{sT0}, 3")
        b(f"v_xor_b32 v{vE+6}, s{sT0}, v{r0}")
        b(f"v_lshl_add_u32 v{vE+6}, v{vE+6}, 5, v{vE+4}")
        for par in range(2):
            b(f"s_xor_b32 s{sT2}, s{sT1}, {par}"); b(f"s_lshl_b32 s{sT2}, s{sT2}, 11")
            b(f"v_add_u32 v{vWR+2*j+par}, s{sT2}, v{vE+6}")
        b(f"s_lshr_b32 s{sT2}, s{sT0}, 1"); b(f"s_lshl_b32 s{sT3}, s{sCG}, 1"); b(f"s_add_u32 s{sT2}, s{sT2}, s{sT3}")
        b(f"s_lshl_b32 s{sT2}, s{sT2}, 17"); b(f"s_and_b32 s{sT0}, s{sT0}, 1"); b(f"s_lshl_b32 s{sT0}, s{sT0}, 9")
        b(f"s_add_u32 s{sSO[j]}, s{sT2}, s{sT0}")
    for j in range(2):
        b(f"s_and_b32 s{sT0}, s{sWV}, 1"); b(f"s_xor_b32 s{sT0}, s{sT0}, {j}")
        b(f"v_xor_b32 v{vE+6}, s{sT0}, v{mat}")
        b(f"v_lshl_add_u32 v{vE+6}, v{vE+6}, 5, v{vE+5}")
        for par in range(2):
            b(f"s_xor_b32 s{sT2}, s{sT1}, {par}"); b(f"s_lshl_b32 s{sT2}, s{sT2}, 10")
            b(f"v_add_u32 v{vWR2+2*j+par}, s{sT2}, v{vE+6}")
    b(f"s_lshr_b32 s{sT0}, s{sWV}, 1"); b(f"s_lshl_b32 s{sT0}, s{sT0}, 1")
    b(f"v_and_b32 v{vE}, 3, v{vLANE}"); b(f"v_xor_b32 v{vE}, s{sT0}, v{vE}"); b(f"v_lshlrev_b32 v{vE}, 4, v{vE}")
    b(f"v_lshrrev_b32 v{vE+1}, 2, v{vLANE}"); b(f"v_mul_u32_u24 v{vE+1}, 3456, v{vE+1}"); b(f"v_add_u32 v{vE}, v{vE}, v{vE+1}")
    b(f"s_and_b32 s{sT2}, s{sWV}, 1"); b(f"s_mul_i32 s{sT3}, s{sT2}, {64*3456}")
    b(f"v_add_u32 v{vWD2}, s{sT3}, v{vE}")
    for i in range(1, 4): b(f"v_add_u32 v{vWD2+i}, {i*(16*3456-1024)}, v{vWD2}")
    sel_setup(b)
    flag_setup(b)
    b.add(I("<WARM_FFN>:"))
    b(f"v_lshrrev_b32 v{vE}, 4, v{vLANE}"); b(f"v_lshlrev_b32 v{vE}, 3, v{vE}")
    b(f"v_bfe_u32 v{vE+1}, v{vLANE}, 2, 2"); b(f"v_add_u32 v{vE}, v{vE}, v{vE+1}"); b(f"v_lshlrev_b32 v{vE}, 7, v{vE}")
    b(f"v_and_b32 v{vE+1}, 3, v{vLANE}"); b(f"v_lshl_add_u32 v{vE}, v{vE+1}, 3, v{vE}")
    b(f"v_add_u32 v{vE}, s{sM0X}, v{vE}")
    b.add(W(pre_ld))
    prd = []
    for cb in range(4):
        for hf in range(2):
            prd.append(b(f"ds_read_b64_tr_b16 v[{vACC+4*cb+2*hf}:{vACC+4*cb+2*hf+1}], v{vE} offset:{4*4096 + cb*32 + hf*512}"))
    for cb in range(4):
        pre_st.append(b(f"buffer_store_dwordx4 {v(vACC+4*cb,4)}, v{vL16}, {srd(S_B2)}, s{sG} offen offset:{1024*cb} sc1"))
    b.add(xi[4])
    stamp(b, 1)

    st = Stream()
    main = []
    corr_at = {}
    n = 0
    first_gap = {}
    sb_first = {}; sb_last = {}
    accb = [vACC, vACC + 64, vACC]
    for cc, (sb, c) in enumerate(CH):
        nblk = 4 if sb < 2 else 2; nks = 4 if sb < 2 else 8
        for ks in range(nks):
            kk = c * nks + ks
            if sb >= 1 and c == 1 and ks == (1 if sb < 2 else 2):
                corr_at[sb - 1] = len(st.m)
                for j in range(4):
                    d = accb[sb - 1] + 16 * j
                    st.add(I(f"v_mfma_f32_32x32x16_bf16 {v(d,16)}, {v(vQ,4)}, {v(vXM + 4*(j%2),4)}, {v(d,16)}"))
            for j in range(nblk):
                d = accb[sb] + 16 * j; fr = vFR + 4 * (n % NF)
                g = st.add(I(f"v_mfma_f32_32x32x16_bf16 {v(d,16)}, {v(fr,4)}, {a(4*kk,4)}, {'0' if kk == 0 else v(d,16)}"))
                main.append((g, sb, cc, ks, j, kk)); n += 1
                if ks == 0 and j == 0: first_gap[cc] = len(main) - 1
                if kk == 0 and j == 0: sb_first[sb] = g
                if j == 0 and (sb < 2 or ks % 2 == 0):
                    cs = vCS + 4 * (sb % 2)
                    st.add(I(f"v_mfma_f32_16x16x32_bf16 {v(cs,4)}, {v(vSEL,4)}, {v(fr,4)}, {'0' if kk == 0 else v(cs,4)}"))
                if sb == 0 and j == 1:
                    st.add(I(f"v_mfma_f32_16x16x32_bf16 {v(vSUM,4)}, {v(vSEL,4)}, {a(4*kk,4)}, {'0' if kk == 0 else v(vSUM,4)}"))
                if sb == 0 and j >= 2:
                    xr = a(4 * kk + 2 * (j - 2), 2)
                    st.add(I(f"v_mfma_f32_4x4x4_16b_bf16 {v(vSQ,4)}, {xr}, {xr}, {'0' if (kk == 0 and j == 2) else v(vSQ,4)}"))
            sb_last[sb] = len(st.m) - 1
    def wread(idx):
        g, sb, cc, ks, j, kk = main[idx]
        fr = vFR + 4 * (idx % NF); slot = (cc % NSLOT) * 16384
        if sb < 2: ad = vWR + 2 * j + (ks & 1); off = slot + (ks >> 1) * 4096; hs = 512
        else: ad = vWR2 + 2 * j + (ks & 1); off = slot + (ks >> 1) * 2048; hs = 256
        return [I(f"ds_read_b64_tr_b16 v[{fr}:{fr+1}], v{ad} offset:{off}"), I(f"ds_read_b64_tr_b16 v[{fr+2}:{fr+3}], v{ad} offset:{off+hs}")]
    xrd = {}
    def xread(kk):
        xrd[kk] = I(f"ds_read_b128 {a(4*kk,4)}, v{vXR + kk % 4} offset:{((kk // 4) % NX) * 4096}")
        return xrd[kk]
    b.add(W(xt[0], wt[0])); b("s_barrier")
    b.add(xread(0))
    for idx in range(LA): b.add(wread(idx))
    cs_wr = {}
    for idx in range(len(main)):
        g, sb, cc, ks, j, kk = main[idx]
        t = idx + LA
        if t < len(main):
            g2, sb2, cc2, ks2, j2, kk2 = main[t]
            if first_gap[cc2] == t:
                toks = list(wt[cc2])
                if sb2 == 0: toks += xt[cc2]
                if cc2 == 5: toks += pre_st
                key = CH[cc2]
                if CH[cc2][1] == 1 and sb2 >= 1:
                    cs_wr[sb2 - 1] = [I(f"ds_write2st64_b32 v{vT2}, v{vT3}, v{vT3} offset0:0 offset1:4")]
                    toks += cs_wr[sb2 - 1]
                st.pin(g, W(toks), I("s_barrier"))
                if cc2 == 5: st.pin(g, *dbg_flag_store(vT0))
                nxt = []
                if cc2 + 3 < len(CH): nxt += wi[cc2 + 3]
                if sb2 == 0 and cc2 + 4 < 10:
                    nxt += [W([xrd[4 * (cc2 - 1) + q] for q in range(4)])] + xi[cc2 + 4]
                for k, ins in enumerate(nxt):
                    st.pin(main[min(idx + 2 + k, len(main) - 1)][0], ins)
                if CH[cc2][1] == 1 and sb2 >= 1:
                    st.pin(main[idx + 1][0], I(f"ds_read2st64_b32 v[{vQ}:{vQ+1}], v{vT2} offset0:0 offset1:1"),
                           I(f"ds_read2st64_b32 v[{vQ+2}:{vQ+3}], v{vT2} offset0:2 offset1:3"))
            if sb2 == 0 and j2 == 0: st.pin(g, xread(kk2))
            st.pin(g, *wread(t))
    def trow(bb, t): bb(f"v_and_b32 v{t}, 31, v{vLANE}")
    store_toks = {0: [], 1: [], 2: []}
    for sb in range(2):
        q = B()
        q(f"s_lshl_b32 s{sT2}, s{sWV}, 8"); q(f"s_add_u32 s{sT2}, s{sT2}, {CSX}")
        q(f"v_lshl_add_u32 v{vT2}, v{vLANE}, 2, s{sT2}")
        cs_pack(q, vT3, vCS + 4 * (sb % 2), vT1)
        q.add(cs_wr[sb])
        bar_gap = main[first_gap[10 * (sb + 1) + 1] - LA][0]
        st.queue(q.l, sb_last[sb] + 2, bar_gap - 1, name=f"cs{sb}")
        q = B()
        if sb == 0:
            q.add(stats_final(trow))
            q(f"v_mul_f32 v{vK1}, {f32(GK1)}, v{vE+1}")
            q(f"v_mul_f32 v{vK2}, v{vE+1}, v{vE+1}"); q(f"v_mul_f32 v{vK2}, v{vK2}, v{vE+1}"); q(f"v_mul_f32 v{vK2}, {f32(GK2)}, v{vK2}")
            q(f"v_mul_f32 v{vKC}, v{vE+2}, v{vE+2}")
            q(f"v_mov_b32 v{vSUM}, v{vE+3}")
        for k in range(8): q(f"v_mov_b32 v{vXM+k}, {'v%d' % vSUM if k in (0, 5) else 0}")
        st.queue(q.l, sb_last[sb] + 2, corr_at[sb] - 1, name=f"st{sb}")
        ca = corr_at[sb]
        st.pin(ca + 0, I(f"v_mov_b32 v{vXM}, 0"), I(f"v_mov_b32 v{vXM+2}, v{vSUM}"))
        st.pin(ca + 1, I(f"v_mov_b32 v{vXM+5}, 0"), I(f"v_mov_b32 v{vXM+7}, v{vSUM}"))
        q = B()
        for j in range(4):
            if sb == 1: q(f"s_add_u32 s{sSO[j]}, s{sSO[j]}, {22*A2_STEP}")
            l, tok = ffn_epilogue(accb[sb] + 16 * j, sSO[j], vE + 8 * (j % 2) + 4 * (j % 2))
            q.add(l); store_toks[sb].append(tok)
        dl = sb_last[sb + 1] - (40 if sb == 0 else 0)
        st.queue(q.l, ca + 4, dl, name=f"ep{sb}")
        if sb == 0:
            st.pin(sb_last[1] - 1, W(store_toks[0]), *flag_store(1, vT0))
    b.add(st.schedule(lambda g, mf: mf.passes * 4 - 8 - (2 if mf.passes == 8 else 0)))
    print("FFN stream: gaps", len(st.m), "overflow cycles", st.over, {q['name']: q['done_gap'] for q in st.queues}, sb_first, sb_last, file=sys.stderr)
    stamp(b, 2)
    cs_pack(b, vT3, vCS, vT1)
    b(f"ds_write2st64_b32 v{vT2}, v{vT3}, v{vT3} offset0:0 offset1:4")
    for k in range(8): b(f"v_mov_b32 v{vXM+k}, {'v%d' % vSUM if k in (0, 2, 5, 7) else 0}")
    b("s_waitcnt lgkmcnt(0)"); b("s_barrier")
    b(f"ds_read2st64_b32 v[{vQ}:{vQ+1}], v{vT2} offset0:0 offset1:1")
    b(f"ds_read2st64_b32 v[{vQ+2}:{vQ+3}], v{vT2} offset0:2 offset1:3")
    b(f"s_add_u32 s{sT0}, s{sCG}, 44"); b(f"s_lshl_b32 s{sT0}, s{sT0}, 17")
    b(f"s_cmp_eq_u32 s{sCG}, 10"); b(f"s_cselect_b32 s{sT0}, {OOB}, s{sT0}")
    b(f"s_and_b32 s{sT1}, s{sWV}, 1"); b(f"s_lshl_b32 s{sT1}, s{sT1}, 9")
    b(f"s_add_u32 s{sSO[0]}, s{sT0}, s{sT1}"); b(f"s_xor_b32 s{sSO[1]}, s{sSO[0]}, 512")
    for j in range(2):
        d = accb[2] + 16 * j
        b(f"v_mfma_f32_32x32x16_bf16 {v(d,16)}, {v(vQ,4)}, {v(vXM+4*j,4)}, {v(d,16)}")
    for j in range(2):
        l, tok = ffn_epilogue(accb[2] + 16 * j, sSO[j], vE + 12 * j)
        b.add(l); store_toks[2].append(tok)
    stamp(b, 3)
    b.add(W(store_toks[2])); b.add(flag_store(3, vT0))
    stamp(b, 4)
    phase2(b)
    return b

def cmul(b, dr, di, ar, ai, br, bi):
    b(f"v_mul_f32 v{dr}, v{ar}, v{br}"); b(f"v_mul_f32 v{di}, v{ar}, v{bi}")
    b(f"v_fma_f32 v{dr}, -v{ai}, v{bi}, v{dr}"); b(f"v_fma_f32 v{di}, v{ai}, v{br}, v{di}")
def cfma(b, dr, di, ar, ai, br, bi, cr, ci):
    b(f"v_fma_f32 v{dr}, v{ar}, v{br}, v{cr}"); b(f"v_fma_f32 v{di}, v{ar}, v{bi}, v{ci}")
    b(f"v_fma_f32 v{dr}, -v{ai}, v{bi}, v{dr}"); b(f"v_fma_f32 v{di}, v{ai}, v{br}, v{di}")
def p2(r): return f"v[{r}:{r+1}]"
BA = "op_sel:[0,0,0] op_sel_hi:[0,1,1]"
BB = "op_sel:[1,0,0] op_sel_hi:[1,1,1]"
NEG = " neg_lo:[1,0,0] neg_hi:[1,0,0]"

def ssm_path():
    global vE
    b = B()
    b("L_ssm:")
    stamp(b, 0)
    b(f"s_sub_u32 s{sG}, s{sCG}, 11")
    b(f"v_lshrrev_b32 v{vE}, 2, v{vT2}"); b(f"v_lshlrev_b32 v{vE}, 4, v{vE}")
    b(f"v_and_b32 v{vE+1}, 1, v{vT2}"); b(f"v_lshl_add_u32 v{vE}, v{vE+1}, 3, v{vE}")
    b(f"v_bfe_u32 v{vE+1}, v{vT2}, 1, 1"); b(f"v_add_u32 v{vE}, v{vE}, v{vE+1}")
    b(f"v_mul_u32_u24 v{vT3}, 1280, v{vE}")
    for i in range(4):
        b(f"v_add_u32 v{vXD+i}, v{vT3}, v{vT0 if i % 2 == 0 else vT1}")
        if i: b(f"v_add_u32 v{vXD+i}, {i*(2560-1024)}, v{vXD+i}")
    xi, xt = {}, {}
    for c in range(10): xi[c], xt[c] = x_dma(c)
    b.add(xi[0])
    b(f"s_cmp_ge_u32 s{sWV}, 2")
    b(f"s_cselect_b32 s{S_W}, s{P_BIM}, s{P_BRE}"); b(f"s_cselect_b32 s{S_W+1}, s{P_BIM+1}, s{P_BRE+1}")
    b(f"s_and_b32 s{S_W+1}, s{S_W+1}, 0xffff"); b(f"s_mov_b32 s{S_W+2}, {640*1280}"); b(f"s_mov_b32 s{S_W+3}, 0x20000")
    b(f"s_lshl_b32 s{sT0}, s{sG}, 2"); b(f"s_and_b32 s{sT1}, s{sWV}, 1"); b(f"s_add_u32 s{sT0}, s{sT0}, s{sT1}")
    b(f"s_mul_i32 s{sCOL[0]}, s{sT0}, {32*1280}"); b(f"s_add_u32 s{sCOL[1]}, s{sCOL[0]}, {64*1280}")
    b(f"v_lshrrev_b32 v{vE}, 2, v{vT2}"); b(f"v_lshlrev_b32 v{vE}, 3, v{vE}")
    b(f"v_and_b32 v{vE+1}, 3, v{vT2}"); b(f"v_add_u32 v{vE}, v{vE}, v{vE+1}"); b(f"v_mul_u32_u24 v{vE}, 1280, v{vE}")
    for i in range(4):
        b(f"v_add_u32 v{vWD+i}, v{vE}, v{vT0 if i % 2 == 0 else vT1}")
        if i: b(f"v_add_u32 v{vWD+i}, {(16*(i>>1) + 4*(i&1))*1280 - 1024*i}, v{vWD+i}")
    CH = [(sb, c) for sb in range(2) for c in range(10)]
    wi, wt = {}, {}
    for cc, (sb, c) in enumerate(CH):
        wi[cc], wt[cc] = w_dma(cc, vWD, 128, sCOL[sb] if c == 0 else None)
    b.add(wi[0])
    PR = vACC + 64
    b(f"s_lshl_b32 s{sT0}, s{sG}, 2"); b(f"s_add_u32 s{sT0}, s{sT0}, s{sWV}"); b(f"s_lshl_b32 s{sT0}, s{sT0}, 6")
    b(f"v_and_b32 v{vE}, 31, v{vLANE}"); b(f"v_lshl_add_u32 v{vE+1}, v{vE}, 1, s{sT0}")
    b(f"global_load_ushort v{PR}, v{vE+1}, s[{P_LRE}:{P_LRE+1}]")
    b(f"global_load_ushort v{PR+1}, v{vE+1}, s[{P_LIM}:{P_LIM+1}]")
    b(f"global_load_ushort v{PR+2}, v{vE+1}, s[{P_LDT}:{P_LDT+1}]")
    common_srds(b)
    b.srd(S_P0, P_CRE, 640 * 1280); b.srd(S_P1, P_CIM, 640 * 1280)
    b(f"v_lshrrev_b32 v{vE+2}, 2, v{vLANE}"); b(f"v_mul_u32_u24 v{vE+2}, 1280, v{vE+2}")
    b(f"v_and_b32 v{vE+3}, 3, v{vLANE}"); b(f"v_lshl_add_u32 v{vE+2}, v{vE+3}, 4, v{vE+2}")
    b(f"s_mul_i32 s{sT1}, s{sRB}, 20480"); b(f"s_add_u32 s{sT1}, s{sT1}, s{sT0}")
    CR = vACC
    for q in range(3):
        b(f"buffer_load_dwordx4 {v(CR+8*q,4)}, v{vE+2}, {srd(S_P0)}, s{sT1} offen")
        b(f"buffer_load_dwordx4 {v(CR+8*q+4,4)}, v{vE+2}, {srd(S_P1)}, s{sT1} offen")
        if q < 2: b(f"s_add_u32 s{sT1}, s{sT1}, {16*20480}")
    for c in range(1, 4):
        b.add(xi[c]); b.add(wi[c])
    pre_st = []
    l = flag_store(0, vE + 4); b.add(l); pre_st.append(l[-1])
    b(f"s_lshl_b32 s{sT1}, s{sG}, 14"); b(f"s_add_u32 s{sT1}, s{sT1}, {WS_FLG + WS_E}")
    b(f"s_add_u32 s{S_E}, s{P_WS}, s{sT1}"); b(f"s_addc_u32 s{S_E+1}, s{P_WS+1}, 0"); b(f"s_and_b32 s{S_E+1}, s{S_E+1}, 0xffff")
    b(f"s_mov_b32 s{S_E+2}, 16384"); b(f"s_mov_b32 s{S_E+3}, 0x20000")
    b(f"s_sub_u32 s{sSO[3]}, 15, s{sRB}"); b(f"s_lshl_b32 s{sSO[3]}, s{sSO[3]}, 10")
    b(f"s_add_u32 s{sSO[2]}, s{sSO[3]}, s{sW0}")
    for k in range(4): b(f"v_mov_b32 v{vE+4+k}, -1")
    pre_st.append(b(f"buffer_store_dwordx4 {v(vE+4,4)}, v{vL16}, {srd(S_E)}, s{sSO[2]} offen sc1"))
    b(f"s_mov_b32 s{sT0}, s{sWV}")
    frag_addr_setup(b, None)
    for k in range(4):
        b(f"v_mov_b32 v{vWR+k}, v{vXR+k}"); b(f"v_add_u32 v{vXR+k}, s{sM0X}, v{vXR+k}")
    sel_setup(b)
    flag_setup(b)
    b.add(I("<WARM_SSM>:"))
    lr, li, dt, zr, zi, mg = PR, PR + 1, PR + 2, PR + 3, PR + 4, PR + 5
    L1 = PR + 8
    LQ = PR + 12
    CF = PR + 30; TA = PR + 32; TB = PR + 34
    LOG2E = math.log2(math.e)
    for r in (lr, li, dt): b(f"v_lshlrev_b32 v{r}, 16, v{r}")
    b(f"v_mul_f32 v{dt}, {f32(LOG2E)}, v{dt}"); b(f"v_exp_f32 v{dt}, v{dt}"); bf16_round(b, dt, dt)
    b(f"v_mul_f32 v{zr}, v{dt}, v{lr}"); b(f"v_mul_f32 v{zi}, v{dt}, v{li}")
    b(f"v_mul_f32 v{zr}, {f32(LOG2E)}, v{zr}"); b(f"v_exp_f32 v{mg}, v{zr}")
    b(f"v_mul_f32 v{zi}, 0.15915494, v{zi}")
    b(f"v_rndne_f32 v{zr}, v{zi}"); b(f"v_sub_f32 v{zi}, v{zi}, v{zr}")
    b(f"v_cos_f32 v{L1}, v{zi}"); b(f"v_sin_f32 v{L1+1}, v{zi}")
    b(f"v_mul_f32 v{L1}, v{L1}, v{mg}"); b(f"v_mul_f32 v{L1+1}, v{L1+1}, v{mg}")
    b(f"v_mul_f32 v{zr}, v{lr}, v{lr}"); b(f"v_fma_f32 v{zr}, v{li}, v{li}, v{zr}"); b(f"v_rcp_f32 v{zr}, v{zr}")
    b(f"v_add_f32 v{zi}, -1.0, v{L1}")
    b(f"v_add_f32 v{zr}, v{zr}, v{zr}")
    b(f"v_mul_f32 v{CF}, v{zi}, v{lr}"); b(f"v_fma_f32 v{CF}, v{L1+1}, v{li}, v{CF}")
    b(f"v_mul_f32 v{CF+1}, v{L1+1}, v{lr}"); b(f"v_fma_f32 v{CF+1}, -v{zi}, v{li}, v{CF+1}")
    b(f"v_mul_f32 v{CF}, v{CF}, v{zr}"); b(f"v_mul_f32 v{CF+1}, v{CF+1}, v{zr}")
    def csq(d, s): cmul(b, d, d + 1, s, s + 1, s, s + 1)
    csq(TA, L1); csq(TB, TA); csq(L1 + 2, TB); csq(LQ + 2, L1 + 2)
    b(f"v_mov_b32 v{LQ}, 1.0"); b(f"v_mov_b32 v{LQ+1}, 0")
    def lq(q, x, y): cmul(b, LQ + 2*q, LQ + 2*q + 1, LQ + 2*x, LQ + 2*x + 1, LQ + 2*y, LQ + 2*y + 1)
    lq(2, 1, 1); lq(3, 2, 1); lq(4, 2, 2); lq(5, 4, 1); lq(6, 4, 2); lq(7, 4, 3); lq(8, 4, 4)
    b(f"v_and_b32 v{vE+2}, 31, v{vLANE}"); b(f"s_lshl_b32 s{sT0}, s{sWV}, 5"); b(f"v_add_u32 v{vE}, s{sT0}, v{vE+2}")
    b(f"v_lshlrev_b32 v{vE+1}, 4, v{vE}"); b(f"v_add_u32 v{vE+1}, {PL}, v{vE+1}")
    b(f"v_lshlrev_b32 v{vE+3}, 6, v{vE}"); b(f"v_add_u32 v{vE+3}, {PA}, v{vE+3}")
    b(f"v_lshlrev_b32 v{vE}, 3, v{vE}"); b(f"v_add_u32 v{vE}, {PH}, v{vE}")
    b(f"v_lshl_add_u32 v{vE+2}, v{vE+2}, 3, s{sM0X}")
    b(f"ds_write_b64 v{vE+2}, {p2(CF)} offset:{XS4}")
    ptw = [b(f"ds_write_b128 v{vE+1}, {v(L1,4)}"), b(f"ds_write_b64 v{vE}, {p2(LQ+16)}")]
    for k in range(4): ptw.append(b(f"ds_write_b128 v{vE+3}, {v(LQ+4*k,4)} offset:{16*k}"))
    b(f"v_and_b32 v{vE}, 3, v{vLANE}"); b(f"v_lshlrev_b32 v{vE}, 6, v{vE}")
    b(f"v_add_u32 v{vE}, s{sM0X}, v{vE}"); b(f"v_add_u32 v{vE}, {XS4}, v{vE}")
    CO = PR + 36
    for k in range(4): b(f"ds_read_b128 {v(CO+4*k,4)}, v{vE} offset:{16*k}")
    b(f"v_and_b32 v{vE}, 3, v{vLANE}"); b(f"v_lshlrev_b32 v{vE}, 4, v{vE}")
    b(f"v_lshrrev_b32 v{vE+1}, 2, v{vLANE}"); b(f"v_add_u32 v{vE}, v{vE}, v{vE+1}"); b(f"v_lshlrev_b32 v{vE}, 4, v{vE}")
    b(f"v_add_u32 v{vE}, s{sM0X}, v{vE}"); b(f"v_add_u32 v{vE+1}, s{sM0X}, v{vL16}")
    b(f"s_lshl_b32 s{sT0}, s{sG}, 2"); b(f"s_add_u32 s{sT0}, s{sT0}, s{sWV}"); b(f"s_lshl_b32 s{sT0}, s{sT0}, 1"); b(f"s_add_u32 s{sT0}, s{sT0}, 54")
    b(f"s_mul_i32 s{sT0}, s{sT0}, {B2_STEP}"); b(f"s_lshl_b32 s{sT1}, s{sRB}, 10"); b(f"s_add_u32 s{sT0}, s{sT0}, s{sT1}")
    U = vACC + 24
    OR_ = vACC + 32
    rel = []
    for q in range(3):
        for d in range(4):
            b(f"v_lshlrev_b32 v{U}, 16, v{CR+8*q+d}"); b(f"v_lshlrev_b32 v{U+1}, 16, v{CR+8*q+4+d}")
            b(f"v_and_b32 v{U+2}, 0xffff0000, v{CR+8*q+d}"); b(f"v_and_b32 v{U+3}, 0xffff0000, v{CR+8*q+4+d}")
            for e in range(2):
                ca, cb_ = CO + 4 * d + 2 * e, CO + 4 * d + 2 * e + 1
                cr, ci = U + 2 * e, U + 2 * e + 1
                b(f"v_mul_f32 v{U+4+e}, v{cr}, v{ca}"); b(f"v_fma_f32 v{U+4+e}, -v{ci}, v{cb_}, v{U+4+e}")
                b(f"v_mul_f32 v{U+6+e}, v{cr}, v{cb_}"); b(f"v_fma_f32 v{U+6+e}, v{ci}, v{ca}, v{U+6+e}")
            b(f"v_cvt_pk_bf16_f32 v{OR_+d}, v{U+4}, v{U+5}")
            b(f"v_cvt_pk_bf16_f32 v{OR_+4+d}, -v{U+6}, -v{U+7}")
        so = 4 * 4096 + (q % 2) * 2048
        RB_ = OR_ + 8 + 8 * (q % 2)
        b(f"ds_write_b128 v{vE}, {v(OR_,4)} offset:{so}"); b(f"ds_write_b128 v{vE}, {v(OR_+4,4)} offset:{so+1024}")
        rel.append(b(f"ds_read_b128 {v(RB_,4)}, v{vE+1} offset:{so}")); rel.append(b(f"ds_read_b128 {v(RB_+4,4)}, v{vE+1} offset:{so+1024}"))
        if q == 2:
            b(f"s_cmp_ge_u32 s{sRB}, 8"); b(f"s_cselect_b32 s{sT0}, {OOB}, s{sT0}")
        b(f"s_add_u32 s{sT1}, s{sT0}, {B2_STEP}")
        pre_st.append(b(f"buffer_store_dwordx4 {v(RB_,4)}, v{vL16}, {srd(S_B2)}, s{sT0} offen sc1"))
        pre_st.append(b(f"buffer_store_dwordx4 {v(RB_+4,4)}, v{vL16}, {srd(S_B2)}, s{sT1} offen sc1"))
        if q < 2: b(f"s_add_u32 s{sT0}, s{sT0}, 16384")
    b.add(xi[4])
    stamp(b, 1)

    st = Stream(); main = []; first_gap = {}; sb_last = {}; corr_at = {}
    accb = [vACC, vACC + 64]
    vQS = 26
    QG = [26, 30, 96, 100]
    vCS2 = [44, 104]
    n = 0
    for cc, (sb, c) in enumerate(CH):
        for ks in range(4):
            kk = c * 4 + ks
            if sb == 1 and c == 1 and ks == 2:
                corr_at[0] = len(st.m)
                for j in range(4):
                    d = accb[0] + 16 * j
                    st.add(I(f"v_mfma_f32_32x32x16_bf16 {v(d,16)}, {v(vXM,4)}, {v(QG[j],4)}, {v(d,16)}"))
            for j in range(4):
                d = accb[sb] + 16 * j; fr = vFR + 4 * (n % NF)
                g = st.add(I(f"v_mfma_f32_32x32x16_bf16 {v(d,16)}, {a(4*kk,4)}, {v(fr,4)}, {'0' if kk == 0 else v(d,16)}"))
                main.append((g, sb, cc, ks, j, kk)); n += 1
                if ks == 0 and j == 0: first_gap[cc] = len(main) - 1
                if ks == 0:
                    cs = vCS2[sb] + 4 * j
                    st.add(I(f"v_mfma_f32_16x16x32_bf16 {v(cs,4)}, {v(vSEL,4)}, {v(fr,4)}, {'0' if kk == 0 else v(cs,4)}"))
                if sb == 0 and j == 1:
                    st.add(I(f"v_mfma_f32_16x16x32_bf16 {v(vSUM,4)}, {v(vSEL,4)}, {a(4*kk,4)}, {'0' if kk == 0 else v(vSUM,4)}"))
                if sb == 0 and j >= 2:
                    xr = a(4 * kk + 2 * (j - 2), 2)
                    st.add(I(f"v_mfma_f32_4x4x4_16b_bf16 {v(vSQ,4)}, {xr}, {xr}, {'0' if (kk == 0 and j == 2) else v(vSQ,4)}"))
            sb_last[sb] = len(st.m) - 1
    def wread(idx):
        g, sb, cc, ks, j, kk = main[idx]
        fr = vFR + 4 * (idx % NF)
        return [I(f"ds_read_b128 {v(fr,4)}, v{vWR+ks} offset:{(cc % NSLOT) * 16384 + j * 4096}")]
    xrd = {}
    def xread(kk):
        xrd[kk] = I(f"ds_read_b128 {a(4*kk,4)}, v{vXR + kk % 4} offset:{((kk // 4) % NX) * 4096}")
        return xrd[kk]
    b.add(W(xt[0], wt[0], ptw)); b("s_barrier")
    b.add(xread(0))
    for idx in range(LA): b.add(wread(idx))
    def cs_write(bb, sb):
        toks = []
        for j in range(4):
            cs_pack(bb, vT3, vCS2[sb] + 4 * j, vT1)
            toks.append(bb(f"ds_write_b32 v{vT2}, v{vT3} offset:{1024*j}"))
        return toks
    q0 = B()
    q0(f"s_lshl_b32 s{sT2}, s{sWV}, 2"); q0(f"s_add_u32 s{sT2}, s{sT2}, {CSX}")
    q0(f"v_add_u32 v{vT2}, s{sT2}, v{vL16}")
    q0(f"v_add_u32 v{vK1}, {CSX}, v{vL16}")
    csw0 = cs_write(q0, 0)
    for idx in range(len(main)):
        g, sb, cc, ks, j, kk = main[idx]
        t = idx + LA
        if t < len(main):
            g2, sb2, cc2, ks2, j2, kk2 = main[t]
            if first_gap[cc2] == t:
                toks = list(wt[cc2])
                if sb2 == 0: toks += xt[cc2]
                if cc2 == 5: toks += pre_st
                if cc2 == 11: toks += csw0
                st.pin(g, W(toks), I("s_barrier"))
                if cc2 == 5: st.pin(g, *dbg_flag_store(vT0))
                nxt = []
                if cc2 + 3 < len(CH): nxt += wi[cc2 + 3]
                if sb2 == 0 and cc2 + 4 < 10:
                    nxt += [W([xrd[4 * (cc2 - 1) + q] for q in range(4)])] + xi[cc2 + 4]
                for k, ins in enumerate(nxt):
                    st.pin(main[min(idx + 2 + k, len(main) - 1)][0], ins)
                if cc2 == 11:
                    for jj in range(4):
                        st.pin(main[idx + 1 + jj][0], I(f"ds_read_b128 {v(QG[jj],4)}, v{vK1} offset:{1024*jj}"))
            if sb2 == 0 and j2 == 0: st.pin(g, xread(kk2))
            st.pin(g, *wread(t))
    bar_gap = main[first_gap[11] - LA][0]
    st.queue(q0.l, sb_last[0] - 12, bar_gap - 1, name="cs0")
    def trow(bb, t):
        bb(f"v_bfe_u32 v{t}, v{vLANE}, 2, 1"); bb(f"v_lshlrev_b32 v{t}, 4, v{t}")
        bb(f"v_and_b32 v{t+1}, 1, v{vLANE}"); bb(f"v_lshl_add_u32 v{t}, v{t+1}, 3, v{t}")
        bb(f"v_bfe_u32 v{t+1}, v{vLANE}, 3, 2"); bb(f"v_lshl_add_u32 v{t}, v{t+1}, 1, v{t}")
        bb(f"v_bfe_u32 v{t+1}, v{vLANE}, 1, 1"); bb(f"v_add_u32 v{t}, v{t}, v{t+1}")
    vE_save = vE; vE = 120
    q = B()
    q.add(stats_final(trow))
    for k in range(4): q(f"v_mov_b32 v{vXM+k}, v{vE+3}")
    q(f"v_and_b32 v{vE+4}, 31, v{vLANE}")
    q(f"v_lshl_add_u32 v{vE+4}, v{vE+4}, 2, s{sM0X}")
    q(f"ds_write_b32 v{vE+4}, v{vE+1} offset:{XS4}")
    vE = vE_save
    st.queue(q.l, sb_last[0] + 2, corr_at[0] - 1, name="st0")
    b.add(st.schedule(lambda g, mf: mf.passes * 4 - 8 - (2 if mf.passes == 8 else 0)))
    print("SSM stream: gaps", len(st.m), "overflow cycles", st.over, {q['name']: q['done_gap'] for q in st.queues}, sb_last, file=sys.stderr)
    stamp(b, 2)
    b(f"v_lshlrev_b32 v{vK2}, 2, v{vLANE}")
    poll_issue(b, S_DBG, vK2)
    cs_write(b, 1)
    RS = 44
    b(f"v_lshrrev_b32 v{vT0}, 5, v{vLANE}")
    b(f"v_lshl_add_u32 v{vT0}, v{vT0}, 4, s{sM0X}")
    for k in range(4): b(f"ds_read_b128 {v(RS+4*k,4)}, v{vT0} offset:{XS4 + 32*k}")
    for k in range(4): b(f"v_mov_b32 v{60+k}, 0")
    b(f"s_lshl_b32 s{sT0}, s{sWV}, 10"); b(f"s_add_u32 s{sT0}, s{sT0}, {SCX - 4096}")
    b(f"v_add_u32 v{vT3}, s{sT0}, v{vL16}")
    b(f"ds_write_b128 v{vT3}, v[60:63]")
    b(f"v_and_b32 v{vT0}, 19, v{vLANE}")
    b(f"v_bfe_u32 v{vT1}, v{vLANE}, 2, 1"); b(f"v_lshl_add_u32 v{vT0}, v{vT1}, 3, v{vT0}")
    b(f"v_bfe_u32 v{vT1}, v{vLANE}, 3, 1"); b(f"v_lshl_add_u32 v{vT0}, v{vT1}, 2, v{vT0}")
    b(f"v_lshlrev_b32 v{vT1}, 4, v{vT0}"); b(f"v_add_u32 v{vT1}, {PL}, v{vT1}")
    b(f"v_lshlrev_b32 v{vT2}, 6, v{vT0}"); b(f"v_add_u32 v{vT2}, {PA}, v{vT2}")
    LB = 64
    L8 = 72
    LM = 6
    AT = 22
    b("s_waitcnt lgkmcnt(0)"); b("s_barrier")
    for jj in range(4): b(f"ds_read_b128 {v(QG[jj],4)}, v{vK1} offset:{1024*jj}")
    b(f"ds_read2_b64 {v(LB,4)}, v{vT1} offset0:0 offset1:64"); b(f"ds_read2_b64 {v(LB+4,4)}, v{vT1} offset0:128 offset1:192")
    b(f"ds_read2_b64 {v(L8,4)}, v{vT1} offset0:1 offset1:65"); b(f"ds_read2_b64 {v(L8+4,4)}, v{vT1} offset0:129 offset1:193")
    for cb in range(4):
        if cb: b(f"v_add_u32 v{vT2}, 2048, v{vT2}")
        b(f"ds_read2_b64 {v(LM+4*cb,4)}, v{vT2} offset0:1 offset1:2")
    LH = 80
    b(f"v_lshrrev_b32 v{vT1}, 5, v{vLANE}"); b(f"v_lshl_add_u32 v{vT0}, v{vT1}, 6, v{vT0}")
    b(f"v_lshlrev_b32 v{vT0}, 3, v{vT0}"); b(f"v_add_u32 v{vT0}, {PH}, v{vT0}")
    b(f"ds_read2_b64 {v(LH,4)}, v{vT0} offset0:0 offset1:32")
    b(f"s_lshl_b32 s{sT0}, s{sWV}, 4"); b(f"s_sub_u32 s{sT0}, s{sT0}, {3*2048}")
    b(f"v_lshl_add_u32 v{vT2}, v{vT1}, 3, v{vT2}"); b(f"v_add_u32 v{vT2}, s{sT0}, v{vT2}")
    RE = lambda cb: accb[cb // 2] + 16 * (cb % 2)
    IM = lambda cb: accb[cb // 2] + 32 + 16 * (cb % 2)
    for j in range(4):
        d = accb[1] + 16 * j
        b(f"v_mfma_f32_32x32x16_bf16 {v(d,16)}, {v(vXM,4)}, {v(QG[j],4)}, {v(d,16)}")
    for blk in range(8):
        for j in range(8):
            r = vACC + 16 * blk + 2 * j
            b(f"v_pk_mul_f32 {p2(r)}, {p2(r)}, {p2(RS+2*j)}")
    for cb in range(4): b(f"ds_read_b64 {p2(AT+2*cb)}, v{vT2} offset:{2048*cb}")
    H = 96
    for j in range(1, 8):
        for cb in range(4):
            L = LB + 2 * cb
            if j == 1: pr, pi = RE(cb), IM(cb)
            else: pr, pi = H + 8 * cb + 4 * (j % 2), H + 8 * cb + 4 * (j % 2) + 2
            nr = H + 8 * cb + 4 * ((j + 1) % 2); ni = nr + 2
            b(f"v_pk_fma_f32 {p2(nr)}, {p2(L)}, {p2(pr)}, {p2(RE(cb)+2*j)} {BA}")
            b(f"v_pk_fma_f32 {p2(ni)}, {p2(L)}, {p2(pi)}, {p2(IM(cb)+2*j)} {BA}")
        for cb in range(4):
            L = LB + 2 * cb
            if j == 1: pr, pi = RE(cb), IM(cb)
            else: pr, pi = H + 8 * cb + 4 * (j % 2), H + 8 * cb + 4 * (j % 2) + 2
            nr = H + 8 * cb + 4 * ((j + 1) % 2); ni = nr + 2
            b(f"v_pk_fma_f32 {p2(nr)}, {p2(L)}, {p2(pi)}, {p2(nr)} {BB}{NEG}")
            b(f"v_pk_fma_f32 {p2(ni)}, {p2(L)}, {p2(pr)}, {p2(ni)} {BB}")
    E32 = 44
    for cb in range(4):
        h = H + 8 * cb; L = L8 + 2 * cb
        cfma(b, h + 4, h + 5, L, L + 1, h, h + 2, h + 1, h + 3)
    for cb in range(4):
        h = H + 8 * cb
        b(f"v_mov_b32 v{h+6}, v{h+4}"); b(f"v_mov_b32 v{h+7}, v{h+5}")
    for cb in range(4):
        h = H + 8 * cb
        b(f"v_permlane32_swap_b32 v{h+4}, v{h+6}"); b(f"v_permlane32_swap_b32 v{h+5}, v{h+7}")
    for cb in range(4):
        h = H + 8 * cb; M = LM + 4 * cb
        cfma(b, E32 + 2 * cb, E32 + 2 * cb + 1, M, M + 1, h + 4, h + 5, h + 6, h + 7)
    b(f"v_and_b32 v{vT0}, 31, v{vLANE}"); b(f"v_lshlrev_b32 v{vT0}, 5, v{vT0}")
    b(f"s_lshl_b32 s{sT0}, s{sWV}, 10"); b(f"s_add_u32 s{sT0}, s{sT0}, {SCX - 3072}"); b(f"v_add_u32 v{vT0}, s{sT0}, v{vT0}")
    b(f"ds_write_b128 v{vT0}, {v(E32,4)} offset:3072"); b(f"ds_write_b128 v{vT0}, {v(E32+4,4)} offset:3088")
    b("s_waitcnt lgkmcnt(0)"); b("s_barrier")
    EWb = [36, 52, 86]
    for i in range(3):
        b(f"ds_read_b128 {v(EWb[i],4)}, v{vT0} offset:{1024*i}"); b(f"ds_read_b128 {v(EWb[i]+4,4)}, v{vT0} offset:{1024*i+16}")
    for i in range(1, 3):
        for cb in range(4):
            M = LM + 4 * cb + 2
            cfma(b, EWb[i] + 2*cb, EWb[i] + 2*cb + 1, M, M + 1, EWb[i-1] + 2*cb, EWb[i-1] + 2*cb + 1, EWb[i] + 2*cb, EWb[i] + 2*cb + 1)
    PW = EWb[2]
    for cb in range(4):
        M = LM + 4 * cb + 2
        cfma(b, E32 + 2*cb, E32 + 2*cb + 1, M, M + 1, PW + 2*cb, PW + 2*cb + 1, E32 + 2*cb, E32 + 2*cb + 1)
    b(f"v_cmp_gt_u32 vcc, 32, v{vLANE}")
    PB = 60
    for k in range(4):
        b(f"v_cndmask_b32 v{PB+k}, v{E32+4+k}, v{E32+k}, vcc")
    for k in range(4): b(f"v_min_u32 v{PB+k}, -2, v{PB+k}")
    b(f"buffer_store_dwordx4 {v(PB,4)}, v{vL16}, {srd(S_E)}, s{sSO[2]} offen sc1")
    stamp(b, 3)
    for cb in range(4):
        h = H + 8 * cb; M = LM + 4 * cb
        cfma(b, h + 4, h + 5, M, M + 1, PW + 2*cb, PW + 2*cb + 1, h + 4, h + 5)
    for cb in range(4):
        h = H + 8 * cb
        b(f"v_cndmask_b32 v{h+6}, v{h+4}, v{PW+2*cb}, vcc")
        b(f"v_cndmask_b32 v{h+4}, v{h+5}, v{PW+2*cb+1}, vcc")
    for cb in range(4):
        h = H + 8 * cb; L = L8 + 2 * cb
        cfma(b, h + 7, h + 5, L, L + 1, h + 6, h + 4, h, h + 2)
    for cb in range(4):
        h = H + 8 * cb; L = L8 + 2 * cb
        cmul(b, h + 1, h + 3, L, L + 1, AT + 2*cb, AT + 2*cb + 1)
        b(f"v_mov_b32 v{h}, v{AT+2*cb}"); b(f"v_mov_b32 v{h+2}, v{AT+2*cb+1}")
    b(f"v_lshlrev_b32 v{vT2}, 2, v{vLANE}")
    poll_check(b, S_DBG, vT2, chk_dbg)
    ER = [6 + 4 * i for i in range(7)] + [36 + 4 * i for i in range(7)] + [92]
    def lb_loads(bb):
        for i in range(15):
            if i % 4 == 0: bb(f"s_add_u32 s{sT0}, s{sSO[3]}, {1024 * (i + 1)}")
            bb(f"buffer_load_dwordx4 {v(ER[i],4)}, v{vL16}, {srd(S_E)}, s{sT0} offen offset:{1024*(i%4)} sc1")
    def lb_check(bb):
        bb(f"v_max_u32 v{vT0}, v{ER[0]}, v{ER[0]+2}")
        for i in range(1, 15): bb(f"v_max3_u32 v{vT0}, v{ER[i]}, v{ER[i]+2}, v{vT0}")
        bb(f"v_cmp_eq_u32 vcc, -1, v{vT0}")
        bb("s_cmp_lg_u64 vcc, 0")
    lb_loads(b)
    SE = 72
    b(f"v_bfe_u32 v{vT0}, v{vLANE}, 3, 1"); b(f"v_lshlrev_b32 v{vT0}, 4, v{vT0}")
    b(f"v_mov_b32 v{vT1}, 0x3f80"); b(f"v_lshlrev_b32 v{vT1}, v{vT0}, v{vT1}")
    b(f"v_lshrrev_b32 v{vT0}, 1, v{vLANE}"); b(f"v_xor_b32 v{vT0}, v{vT0}, v{vLANE}"); b(f"v_and_b32 v{vT0}, 16, v{vT0}")
    b(f"v_and_b32 v{vT3}, 7, v{vLANE}"); b(f"v_or_b32 v{vT0}, v{vT0}, v{vT3}")
    for k in range(8):
        b(f"v_cmp_eq_u32 vcc, {k}, v{vT0}"); b(f"v_cndmask_b32 v{SE+k}, 0, v{vT1}, vcc")
    b(f"s_lshl_b32 s{sSO[0]}, s{sG}, 3"); b(f"s_add_u32 s{sSO[0]}, s{sSO[0]}, 54"); b(f"s_lshl_b32 s{sSO[0]}, s{sSO[0]}, 17")
    lb_check(b)
    k = poll_id[0]; poll_id[0] += 1
    b(f"s_cbranch_scc1 L_slow{k}"); b(f"L_back{k}:")
    sp = B(); sp(f"L_slow{k}:"); sp("s_sleep 1"); lb_loads(sp); sp("s_waitcnt vmcnt(0)")
    sp(f"s_sub_u32 s{sTMO}, s{sTMO}, 1"); sp(f"s_cbranch_scc1 L_back{k}")
    lb_check(sp); sp(f"s_cbranch_scc1 L_slow{k}"); sp(f"s_branch L_back{k}")
    slow_paths.append(sp)
    stamp(b, 4)
    SW = "op_sel:[1,1,0] op_sel_hi:[1,0,1] neg_lo:[1,0,0]"
    for i in range(13, -1, -1):
        for q in range(2):
            b(f"v_pk_fma_f32 {p2(ER[i]+2*q)}, {p2(LH+2*q)}, {p2(ER[i+1]+2*q)}, {p2(ER[i]+2*q)} {BA}")
        for q in range(2):
            b(f"v_pk_fma_f32 {p2(ER[i]+2*q)}, {p2(LH+2*q)}, {p2(ER[i+1]+2*q)}, {p2(ER[i]+2*q)} {SW}")
    HX = ER[0]
    for k in range(4): b(f"v_mov_b32 v{HX+4+k}, v{HX+k}")
    for k in range(4): b(f"v_permlane32_swap_b32 v{HX+k}, v{HX+4+k}")
    for cb in range(4):
        h = H + 8 * cb; X = HX + 2 * cb
        b(f"v_pk_fma_f32 {p2(h+6)}, {p2(X)}, {p2(h)}, {p2(h+6)} {BA}")
        b(f"v_pk_fma_f32 {p2(h+4)}, {p2(X)}, {p2(h+2)}, {p2(h+4)} {BA}")
    for cb in range(4):
        h = H + 8 * cb; X = HX + 2 * cb
        b(f"v_pk_fma_f32 {p2(h+6)}, {p2(X)}, {p2(h+2)}, {p2(h+6)} {BB}{NEG}")
        b(f"v_pk_fma_f32 {p2(h+4)}, {p2(X)}, {p2(h)}, {p2(h+4)} {BB}")
    for j in range(8):
        for ph in range(2):
            for cb in range(4):
                L = LB + 2 * cb
                if j == 0: pr, pi = H + 8 * cb + 6, H + 8 * cb + 4
                else: pr, pi = RE(cb) + 2 * j - 2, IM(cb) + 2 * j - 2
                nr, ni = RE(cb) + 2 * j, IM(cb) + 2 * j
                if ph == 0:
                    b(f"v_pk_fma_f32 {p2(nr)}, {p2(L)}, {p2(pr)}, {p2(nr)} {BA}")
                    b(f"v_pk_fma_f32 {p2(ni)}, {p2(L)}, {p2(pi)}, {p2(ni)} {BA}")
                else:
                    b(f"v_pk_fma_f32 {p2(nr)}, {p2(L)}, {p2(pi)}, {p2(nr)} {BB}{NEG}")
                    b(f"v_pk_fma_f32 {p2(ni)}, {p2(L)}, {p2(pr)}, {p2(ni)} {BB}")
    stamp(b, 5)
    DB = [6, 36, 96, 112]
    blks = [(cb, ri) for cb in range(4) for ri in range(2)]
    def cin(n):
        cb, ri = blks[n]; r = IM(cb) if ri else RE(cb)
        return [I(f"v_cvt_pk_bf16_f32 v{r+j}, v{r+2*j}, v{r+2*j+1}") for j in range(8)]
    stoks = []
    def cout(n):
        d = DB[n % 4]; l = []
        for u in range(2):
            l += [I(f"v_cvt_pk_bf16_f32 v{d+4*u+j}, v{d+8*u+2*j}, v{d+8*u+2*j+1}") for j in range(4)]
            t = I(f"buffer_store_dwordx4 {v(d+4*u,4)}, v{vST}, {srd(S_A2)}, s{sSO[0]} offen offset:{512*u} sc1")
            l.append(t); stoks.append(t)
        l.append(I(f"s_add_u32 s{sSO[0]}, s{sSO[0]}, {A2_STEP}"))
        return l
    b.add(cin(0))
    for n in range(8):
        cb, ri = blks[n]; r = IM(cb) if ri else RE(cb); d = DB[n % 4]
        b(f"v_mfma_f32_32x32x16_bf16 {v(d,16)}, {v(r,4)}, {v(SE,4)}, 0")
        if n + 1 < 8: b.add(cin(n + 1))
        b(f"v_mfma_f32_32x32x16_bf16 {v(d,16)}, {v(r+4,4)}, {v(SE+4,4)}, {v(d,16)}")
        if n >= 1: b.add(cout(n - 1))
    b.add(cout(7))
    b.add(W(stoks)); b.add(flag_store(3, vT0))
    phase2(b)
    return b

def main():
    pro = prologue()
    ffn = ffn_path()
    ssm = ssm_path()
    out = []; stats = {}
    st = finalize(pro.l, State(), out, stats)
    st2 = st.copy()
    finalize(ffn.l, st, out, stats)
    finalize(ssm.l, st2, out, stats)
    for sp in slow_paths: finalize(sp.l, State(), out, stats)
    print("stats", stats, "instrs", len(out), file=sys.stderr)
    ref = open('parallel_sum__ssm_conv_s5__geglu_ffn__prompt.s.ref').read().split('\n')
    hdr = [l for l in ref if l.startswith(';') and '@launch' not in l]
    L = hdr + [f"; @launch grid=(256,1,1) block=(256,1,1) lds={LDS_BYTES}",
               '.amdgcn_target "amdgcn-amd-amdhsa--gfx950"', '.text', f'.globl {KNAME}', '.p2align 8',
               f'.type {KNAME},@function', f'{KNAME}:']
    for i in out:
        t = i.text
        if t.startswith('<'): continue
        t = t.replace('NPAGES_M1', '((L_end-L_pc0)>>12)-1')
        L.append(t if i.kind == 'label' else '  ' + t)
    L += ['L_end:', '  s_endpgm', '.section .rodata,"a"', '.p2align 6', f'.amdhsa_kernel {KNAME}',
          '  .amdhsa_next_free_vgpr 512', '  .amdhsa_next_free_sgpr 102', '  .amdhsa_accum_offset 256',
          '  .amdhsa_group_segment_fixed_size 0', '  .amdhsa_kernarg_size 128', '  .amdhsa_user_sgpr_count 2',
          '  .amdhsa_user_sgpr_kernarg_segment_ptr 1', '  .amdhsa_system_sgpr_workgroup_id_x 1', '.end_amdhsa_kernel', '']
    open(sys.argv[1], 'w').write('\n'.join(L))

main()
```

```python
import sys, math, struct, os, json
from collections import deque
from asmfw import *

KNAME = "parallel_sum__ssm_conv_s5__geglu_ffn__prompt_kernel"
OPT = dict(stamps=0, warm=1, nt=0, pf=1, order=2, dbgts=0, c2=3, c3=12, cs=18, s_c3=6, s_cs=12, sk=12, xd=50, exp=0, pfnt=0, map=1, apf=1, bpf=1, pd=60)
for a_ in sys.argv[2:]:
    k_, v_ = a_.split('='); assert k_ in OPT, k_; OPT[k_] = int(v_)

def f32(x): return "0x%08x" % struct.unpack('<I', struct.pack('<f', x))[0]

RING = 0; NSLOT = 4; XST = 65536; NX = 4; XSZ = 20480; SMALL = 147456
STAT = SMALL; CSX = SMALL + 1024; PL = SMALL + 5120; PA = PL + 2048; PH = PA + 8192
SCX = 40960 + 4096
HXL = CSX
XS4 = 4 * 4096
LDS_BYTES = 163840
assert PH + 1024 <= LDS_BYTES
WS_A2 = 0; A2_STEP = 131072; WS_B2 = 96 * A2_STEP; B2_STEP = 40960
WS_FLG = WS_B2 + 96 * B2_STEP
F_BF = 131072; F_T = F_BF + 196608; F_E = F_T + 4096; F_TS = 524288; F_XB = 786432; F_W2 = F_XB + 1024 * 5120; F_WF = F_W2 + 819200; F_ST = F_WF + 51200; F_SIZE = F_ST + 16384
assert F_E + 20 * 8192 <= F_TS
def BSLOT(j): k = j % 7; return XST + XSZ * k if k < 4 else XSZ * (k - 4)
OOB = 0x7F000000

S_X, S_W, S_A2, S_B2, S_F, S_OUT, S_P0, S_P1, S_E = 40, 44, 48, 52, 56, 64, 68, 72, 76
sWST, sTOK, sPX, sPW = 60, 61, 62, 63
sRB, sCG, sWV, sT0, sT1, sT2, sT3 = 80, 81, 82, 83, 84, 85, 86
sXO, sWO, sM0X, sM0W = 87, 88, 89, 90
sSO = [91, 92, 93, 94]
sQ0 = 95
sMASK = 96
sA2O, sB2O, sTMO, sFLO = 98, 99, 100, 101
sCOL = [3, 4, 5]
sW0 = 6
sG = 7
P_X, P_LRE, P_LIM, P_BRE, P_BIM, P_CRE, P_CIM, P_LDT, P_DSK, P_BX, P_WG, P_WU, P_WD, P_OUT, P_DBG, P_WS = [8 + 2 * i for i in range(16)]
sQ1, sQ2 = 14, 15
sBFO, sBD = 16, 17
sKH, sM0B = 10, 11
sKH, sM0B = 28, 29
sRB2, sA2B = 30, 35
sR0, sR1, sR2, sR3 = 10, 11, 12, 13
sC2 = 34

def srd(base): return f"s[{base}:{base+3}]"
def v(i, n=1): return f"v{i}" if n == 1 else f"v[{i}:{i+n-1}]"
def a(i, n=1): return f"a{i}" if n == 1 else f"a[{i}:{i+n-1}]"
def p2(r): return f"v[{r}:{r+1}]"

class B:
    def __init__(self): self.l = []
    def __call__(self, text):
        i = I(text); self.l.append(i); return i
    def add(self, *ins):
        for i in ins:
            if isinstance(i, (list, tuple)): self.l.extend(i)
            else: self.l.append(i)
    def srd(self, dst, ptr, nbytes, off=0):
        if off:
            self(f"s_add_u32 s{dst}, s{ptr}, {off}"); self(f"s_addc_u32 s{dst+1}, s{ptr+1}, 0")
            self(f"s_and_b32 s{dst+1}, s{dst+1}, 0xffff")
        else:
            self(f"s_mov_b32 s{dst}, s{ptr}"); self(f"s_and_b32 s{dst+1}, s{ptr+1}, 0xffff")
        self(f"s_mov_b32 s{dst+2}, {nbytes}"); self(f"s_mov_b32 s{dst+3}, 0x20000")

STP = [26, 0]
def stamp_ins(name, lvl=1):
    if OPT['stamps'] and (OPT['stamps'] == lvl or lvl == 2): return [I(f"<ST {name}>:")]
    return []
def stamp(b, k, lvl=1): b.add(stamp_ins(str(k), lvl))
def resolve_stamps(l, k0):
    out = []; names = []; k = k0
    for i in l:
        if i.text.startswith('<ST '):
            if k > 0: out.append(I(f"v_writelane_b32 v0, s{STP[(k-1)%2]}, {k-1}"))
            out.append(I(f"s_memtime s[{STP[k%2]}:{STP[k%2]+1}]"))
            names.append(i.text[4:-2]); k += 1
        else: out.append(i)
    assert k <= 62
    return out, names

NT = " nt" if OPT['nt'] else ""

vLANE, vT0, vT1, vT2, vT3 = 1, 2, 3, 4, 5
vXD = 6; vXR = 10; vWD = 14; vWR = 18; vWD2 = 26; vWR2 = 30
vST = 34; vL16 = 35
vSUM = 36; vSQ = 40; vCS = 44
vPW = 52
vPRE = 53
vSEL = 60
vFR = 64; NF = 5; LA = 3
vFLG, vFLO = 84, 85
vK1, vK2, vKC = 86, 87, 88
vBFO = 89
vA = 90
vXM = 92; vQ = 100
vE = 104
vAPF, vBPF, vW2P = 124, 125, 126
vACC = 128

slow_paths = []
poll_id = [0]

def slow_loop(b, issue, checker, sleep=2):
    k = poll_id[0]; poll_id[0] += 1
    checker(b)
    b(f"s_cbranch_scc1 L_slow{k}")
    b(f"L_back{k}:")
    sp = B()
    sp(f"L_slow{k}:")
    sp(f"s_sleep {sleep}")
    issue(sp)
    sp("s_waitcnt vmcnt(0)")
    sp(f"s_sub_u32 s{sTMO}, s{sTMO}, 1")
    sp(f"s_cbranch_scc1 L_back{k}")
    checker(sp)
    sp(f"s_cbranch_scc1 L_slow{k}")
    sp(f"s_branch L_back{k}")
    slow_paths.append(sp)

def af_issue(level):
    return lambda bb: bb(f"buffer_load_dword v{vFLG}, v{vFLO}, {srd(S_F)}, 0 offen offset:{4*(level-1)} sc1")
def af_check(which):
    def f(bb):
        bb(f"v_cmp_ne_u32 vcc, s{sTOK}, v{vFLG}")
        if which == 'ffn': bb(f"s_and_b64 vcc, vcc, s[{sMASK}:{sMASK+1}]")
        else: bb("s_cmp_lg_u64 vcc, 0")
    return f
def bf_issue(which):
    def f(bb):
        if which == 'ffn': bb("s_mov_b64 exec, 0xfff")
        if which == 'ffw': bb("s_mov_b32 exec_lo, 0xfff")
        bb(f"buffer_load_dword v{vFLG}, v{vBFO}, {srd(S_F)}, 0 offen sc1")
        if which != 'all': bb("s_mov_b64 exec, -1")
    return f
def bf_check(which):
    def f(bb):
        bb(f"v_cmp_ne_u32 vcc, s{sTOK}, v{vFLG}")
        if which == 'ffn': bb("s_and_b64 vcc, vcc, 0xfff")
        else:
            if which == 'ffw': bb("s_and_b32 vcc_lo, vcc_lo, 0xfff")
            bb("s_cmp_lg_u64 vcc, 0")
    return f
def poll_pair(issue, check, nm=None):
    bi = B(); issue(bi); bc = B()
    if nm: stamp(bc, nm + 'a', 3)
    slow_loop(bc, issue, check)
    if nm: stamp(bc, nm, 3)
    return bi.l, bc.l

def pf_ins(vo, srdb, so, sc=""):
    if OPT['pfnt']: sc += " nt"
    i = I(f"buffer_load_dword a255, v{vo}, {srd(srdb)}, {so} offen{sc}")
    i.wr = set()
    return i

def a_pf(i0, n):
    if not OPT['apf']: return []
    out = []
    while n > 0:
        k = min(n, 31)
        out += [I(f"s_add_u32 s{sQ1}, s{sA2B}, {i0*2*A2_STEP}"), I(f"s_bfm_b64 exec, {2*k}, 0"), pf_ins(vAPF, S_A2, f"s{sQ1}", " sc1"), I("s_mov_b64 exec, -1")]
        i0 += k; n -= k
    return out
def b_pf(h):
    if not OPT['bpf']: return []
    l = [I(f"s_lshl1_add_u32 s{sQ1}, s{sBD}, s{sB2O}")]
    if h: l.append(I(f"s_add_u32 s{sQ1}, s{sQ1}, {48*B2_STEP}"))
    return l + [pf_ins(vBPF, S_B2, f"s{sQ1}", " sc1")]

def x_dma(c):
    b = B()
    b(f"s_add_u32 m0, s{sM0X}, {(c % NX) * 4096}")
    toks = [b(f"buffer_load_dwordx4 v{vXD+i}, {srd(S_X)}, s{sXO} offen offset:{1024*i}{NT} lds") for i in range(4)]
    b(f"s_add_u32 s{sXO}, s{sXO}, 128")
    return b.l, toks

def w_dma(cc, vbase, step, newoff=None):
    b = B()
    if newoff is not None: b(f"s_mov_b32 s{sWO}, s{newoff}")
    b(f"s_add_u32 m0, s{sM0W}, {RING + (cc % NSLOT) * 16384}")
    if vbase is None: toks = [b(f"buffer_load_dwordx4 v{vL16}, {srd(S_F)}, s{sWO} offen offset:{1024*i} sc1 lds") for i in range(4)]
    else: toks = [b(f"buffer_load_dwordx4 v{vbase+i}, {srd(S_W)}, s{sWO} offen offset:{1024*i}{NT} lds") for i in range(4)]
    b(f"s_add_u32 s{sWO}, s{sWO}, {step}")
    return b.l, toks

HEAD = {}
def prologue():
    b = B()
    b("s_cmp_ge_u32 s2, 256")
    b("s_cbranch_scc1 L_end")
    b("s_load_dwordx16 s[8:23], s[0:1], 0")
    b("s_load_dwordx16 s[24:39], s[0:1], 64")
    b(f"v_and_b32 v{vLANE}, 63, v0")
    b(f"v_lshrrev_b32 v{vT0}, 6, v0")
    b(f"v_lshlrev_b32 v{vL16}, 4, v{vLANE}")
    b(f"v_readfirstlane_b32 s{sWV}, v{vT0}")
    if OPT['warm']:
        b(f"s_getpc_b64 s[{sT1}:{sT2}]")
        b("L_pc0:")
        b(f"s_lshr_b32 s{sT0}, s2, 3")
        b(f"s_min_u32 s{sT0}, s{sT0}, NPAGES_M1")
        b(f"s_lshl_b32 s{sT0}, s{sT0}, 12")
        b(f"v_lshlrev_b32 v{vT1}, 4, v0")
        b(f"v_add_u32 v{vT1}, s{sT0}, v{vT1}")
        i = b(f"global_load_dword a255, v{vT1}, s[{sT1}:{sT2}]"); i.wr = set()
    b(f"s_and_b32 s{sRB}, s2, 1"); b(f"s_lshl_b32 s{sRB}, s{sRB}, 3")
    b(f"s_lshr_b32 s{sT0}, s2, 3"); b(f"s_and_b32 s{sT3}, s{sT0}, 7"); b(f"s_add_u32 s{sRB}, s{sRB}, s{sT3}")
    b(f"s_lshr_b32 s{sT0}, s{sT0}, 3")
    if OPT['map']:
        b(f"s_bfe_u32 s{sCG}, s2, 0x20001"); b(f"s_lshl2_add_u32 s{sCG}, s{sT0}, s{sCG}")
    else:
        b(f"s_and_b32 s{sCG}, s2, 6"); b(f"s_lshl_b32 s{sCG}, s{sCG}, 1"); b(f"s_add_u32 s{sCG}, s{sCG}, s{sT0}")
    b(f"s_lshl_b32 s{sXO}, s{sRB}, 2"); b(f"s_add_u32 s{sPX}, s{sXO}, s{sT0}"); b(f"s_lshl_b32 s{sPX}, s{sPX}, 2")
    b(f"s_add_u32 s{sPX}, s{sPX}, s{sWV}"); b(f"s_mul_i32 s{sPX}, s{sPX}, 10240")
    b(f"s_add_u32 s{sXO}, s{sXO}, s{sWV}"); b(f"s_mul_i32 s{sXO}, s{sXO}, 40960")
    b(f"s_mul_i32 s{sM0X}, s{sWV}, {XSZ}"); b(f"s_add_u32 s{sM0X}, s{sM0X}, {XST}")
    b(f"s_lshl_b32 s{sM0W}, s{sWV}, 12")
    b(f"s_and_b32 s{sT2}, s{sWV}, 1")
    b(f"s_lshl_b32 s{sT3}, s{sT3}, 1"); b(f"s_add_u32 s{sT3}, s{sT3}, s{sT2}"); b(f"s_lshl_b32 s{sT3}, s{sT3}, 2")
    b(f"v_and_b32 v{vE}, 7, v{vLANE}")
    b(f"v_lshrrev_b32 v{vT1}, 4, v{vLANE}")
    b(f"v_xor_b32 v{vT0}, v{vE}, v{vT1}")
    b(f"v_lshlrev_b32 v{vT0}, 4, v{vT0}")
    b(f"v_xor_b32 v{vT1}, 64, v{vT0}")
    b(f"v_lshrrev_b32 v{vT2}, 3, v{vLANE}")
    b(f"v_mul_u32_u24 v{vT3}, 1280, v{vT2}")
    b(f"v_lshl_add_u32 v{vE+8}, v{vE}, 7, v{vT3}")
    b(f"v_and_b32 v{vE+2}, 3, v{vLANE}"); b(f"v_add_u32 v{vE+2}, s{sT3}, v{vE+2}")
    b(f"v_lshrrev_b32 v{vE+3}, 2, v{vLANE}")
    b(f"s_cmp_ge_u32 s{sCG}, 11")
    b("s_cbranch_scc1 L_h_ssm")
    for i in range(4):
        b(f"v_add_u32 v{vXD+i}, v{vT3}, v{vT0 if i % 2 == 0 else vT1}")
        if i: b(f"v_add_u32 v{vXD+i}, {i*(10240-1024)}, v{vXD+i}")
    b(f"s_mul_i32 s{sT0}, s{sCG}, 320"); b(f"s_and_b32 s{sT1}, s{sCG}, 1"); b(f"s_lshl_b32 s{sT3}, s{sT1}, 6")
    b(f"s_add_u32 s{sCOL[0]}, s{sT0}, s{sT3}"); b(f"s_add_u32 s{sCOL[1]}, s{sCOL[0]}, 128")
    b(f"s_xor_b32 s{sT1}, s{sT1}, 1"); b(f"s_lshl_b32 s{sT1}, s{sT1}, 8"); b(f"s_add_u32 s{sCOL[2]}, s{sT0}, s{sT1}")
    b(f"s_mov_b32 s{sPW}, s{sCOL[0]}")
    b(f"s_and_b32 s{sT1}, s{sWV}, 2"); b(f"s_lshl_b32 s{sT1}, s{sT1}, 1")
    b(f"v_bfe_u32 v{vE+1}, v{vLANE}, 4, 1"); b(f"v_lshlrev_b32 v{vE+1}, 1, v{vE+1}"); b(f"v_or_b32 v{vE+1}, s{sT1}, v{vE+1}")
    b(f"v_xor_b32 v{vE}, v{vE}, v{vE+1}"); b(f"v_lshlrev_b32 v{vE}, 4, v{vE}")
    b(f"v_mul_u32_u24 v{vE+1}, 3456, v{vT2}"); b(f"v_add_u32 v{vE}, v{vE}, v{vE+1}")
    b(f"s_mul_i32 s{sT3}, s{sT2}, {32*3456}")
    b(f"v_add_u32 v{vWD}, s{sT3}, v{vE}")
    for i in range(1, 4): b(f"v_add_u32 v{vWD+i}, {i*(8*3456-1024)}, v{vWD}")
    b(f"v_lshl_add_u32 v{vPW}, v{vE+3}, 6, v{vE+2}"); b(f"v_mul_u32_u24 v{vPW}, 3456, v{vPW}")
    b(f"s_mov_b32 s{sWST}, {64*3456}"); b(f"s_mov_b32 s{S_W+2}, {640*3456}")
    b("s_waitcnt lgkmcnt(0)")
    b(f"s_cmp_ge_u32 s{sWV}, 2")
    b(f"s_cselect_b32 s{S_W}, s{P_WU}, s{P_WG}"); b(f"s_cselect_b32 s{S_W+1}, s{P_WU+1}, s{P_WG+1}")
    b("s_branch L_h_join")
    b("L_h_ssm:")
    b(f"s_sub_u32 s{sG}, s{sCG}, 11")
    b(f"v_lshrrev_b32 v{vE}, 2, v{vT2}"); b(f"v_lshlrev_b32 v{vE+4}, 4, v{vE}")
    b(f"v_and_b32 v{vE+1}, 1, v{vT2}"); b(f"v_lshl_add_u32 v{vE+4}, v{vE+1}, 3, v{vE+4}")
    b(f"v_bfe_u32 v{vE+1}, v{vT2}, 1, 1"); b(f"v_add_u32 v{vE+4}, v{vE+4}, v{vE+1}")
    b(f"v_mul_u32_u24 v{vE+4}, 1280, v{vE+4}")
    for i in range(4):
        b(f"v_add_u32 v{vXD+i}, v{vE+4}, v{vT0 if i % 2 == 0 else vT1}")
        if i: b(f"v_add_u32 v{vXD+i}, {i*(2560-1024)}, v{vXD+i}")
    b(f"s_mul_i32 s{sPW}, s{sG}, {128*1280}")
    b(f"s_mul_i32 s{sT3}, s{sT2}, {32*1280}")
    b(f"s_add_u32 s{sCOL[0]}, s{sPW}, s{sT3}"); b(f"s_add_u32 s{sCOL[1]}, s{sCOL[0]}, {64*1280}")
    b(f"v_lshlrev_b32 v{vE}, 3, v{vE}")
    b(f"v_and_b32 v{vE+1}, 3, v{vT2}"); b(f"v_add_u32 v{vE}, v{vE}, v{vE+1}"); b(f"v_mul_u32_u24 v{vE}, 1280, v{vE}")
    for i in range(4):
        b(f"v_add_u32 v{vWD+i}, v{vE}, v{vT0 if i % 2 == 0 else vT1}")
        if i: b(f"v_add_u32 v{vWD+i}, {(16*(i>>1) + 4*(i&1))*1280 - 1024*i}, v{vWD+i}")
    b(f"v_mul_u32_u24 v{vPW}, 1280, v{vE+2}"); b(f"v_lshl_add_u32 v{vPW}, v{vE+3}, 7, v{vPW}")
    b(f"s_mov_b32 s{sWST}, 128"); b(f"s_mov_b32 s{S_W+2}, {640*1280}")
    b("s_waitcnt lgkmcnt(0)")
    b(f"s_cmp_ge_u32 s{sWV}, 2")
    b(f"s_cselect_b32 s{S_W}, s{P_BIM}, s{P_BRE}"); b(f"s_cselect_b32 s{S_W+1}, s{P_BIM+1}, s{P_BRE+1}")
    b("L_h_join:")
    stamp(b, 0, 2)
    b(f"s_and_b32 s{S_W+1}, s{S_W+1}, 0xffff"); b(f"s_mov_b32 s{S_W+3}, 0x20000")
    b.srd(S_X, P_X, 2621440)
    if OPT['stamps']: b("s_memrealtime s[8:9]")
    b(f"s_add_u32 s{sT0}, s{P_WS}, {WS_FLG + F_T}"); b(f"s_addc_u32 s{sT1}, s{P_WS+1}, 0")
    b(f"s_mov_b32 s{sT2}, s{sT1}"); b(f"s_mov_b32 s{sT1}, s{sT0}")
    b(f"s_load_dword s{sTOK}, s[{sT1}:{sT2}], 0")
    def pfa():
        b("s_mov_b32 exec_lo, 0x0f0f0f0f"); b("s_mov_b32 exec_hi, 0x0f0f0f0f")
        b.add(pf_ins(vE + 8, S_X, f"s{sPX}"))
        b("s_mov_b64 exec, 0xffff")
        b.add(pf_ins(vPW, S_W, f"s{sPW}"))
        b("s_mov_b64 exec, -1")
    def pfb():
        b(f"s_add_u32 s{sPX}, s{sPX}, 512")
        b("s_mov_b32 exec_lo, 0x3f3f3f3f"); b("s_mov_b32 exec_hi, 0x3f3f3f3f")
        b.add(pf_ins(vE + 8, S_X, f"s{sPX}"))
        b("s_mov_b32 exec_lo, 0xffff0000"); b("s_mov_b32 exec_hi, 0xff")
        b.add(pf_ins(vPW, S_W, f"s{sPW}"))
        b("s_mov_b64 exec, -1")
    if OPT['exp']:
        def nop(): b("s_nop 15"); b("s_nop 15"); b("s_nop 15")
        def grp(c):
            xi, xt = x_dma(c); wi, wt = w_dma(c, vWD, f"s{sWST}", sCOL[0] if c == 0 else None)
            b.add(xi, wi); return xt + wt
        e = OPT['exp']
        nop()
        if e in (2, 3, 5): pfa(); stamp(b, 'pfa'); nop()
        if e in (3, 5): pfb(); stamp(b, 'pfb'); nop()
        if e in (2, 3): b("s_waitcnt vmcnt(0)"); stamp(b, 'pfw'); nop()
        if e in (6, 7):
            pfa(); b("s_waitcnt vmcnt(0)"); b("s_barrier"); b("s_sleep 20"); stamp(b, 'pfw'); nop()
            if e == 6:
                b(f"s_cmp_eq_u32 s{sWV}, 0"); b(f"s_cselect_b32 s{sPX}, s{sPX}, {OOB}"); b(f"s_cselect_b32 s{sPW}, s{sPW}, {OOB}")
            pfb(); stamp(b, 'pfb'); nop()
        tk = {}
        D = 1 if e in (1, 2, 3, 6, 7) else 2
        for c in range(10 + D):
            if c < 10: tk[c] = grp(c); stamp(b, f'i{c}'); nop()
            if c - D + 1 >= 0 and c - D + 1 < 10: b.add(W(tk[c - D + 1])); stamp(b, f'w{c-D+1}'); nop()
        b.srd(S_F, P_WS, F_SIZE, WS_FLG)
        b("s_memrealtime s[30:31]")
        b("s_waitcnt lgkmcnt(0)")
        stamp(b, 'end', 2)
        b(f"v_writelane_b32 v0, s30, 63")
        b(f"v_writelane_b32 v0, s8, 62")
        b(f"s_lshl_b32 s{sT0}, s2, 2"); b(f"s_add_u32 s{sT0}, s{sT0}, s{sWV}"); b(f"s_lshl_b32 s{sT0}, s{sT0}, 8")
        b(f"s_add_u32 s{sT0}, s{sT0}, {F_TS}")
        b(f"v_lshlrev_b32 v{vT0}, 2, v{vLANE}")
        b(f"buffer_store_dword v0, v{vT0}, {srd(S_F)}, s{sT0} offen")
        b("s_endpgm")
        OPT['stamps'] = 0
    xi, xt = x_dma(0); wi, wt = w_dma(0, vWD, f"s{sWST}", sCOL[0])
    HEAD['xt0'] = xt; HEAD['wt0'] = wt
    if not OPT['pf']: b.add(xi, wi)
    elif OPT['order'] == 0: pfa(); b.add(xi, wi); pfb()
    elif OPT['order'] == 1: b.add(xi, wi); pfa(); pfb()
    elif OPT['order'] == 2: pfa(); pfb()
    elif OPT['order'] == 3: pfa()
    HEAD['pfb'] = B(); bsave = b; b = HEAD['pfb']; pfb(); b = bsave
    b(f"v_cmp_gt_u32 vcc, 40, v{vLANE}"); b(f"v_mov_b32 v{vE}, {OOB}")
    b(f"v_cndmask_b32 v{vPW}, v{vE}, v{vPW}, vcc")
    stamp(b, 'iss', 2)
    b(f"s_mov_b32 s{sTMO}, 200000")
    b(f"s_cmp_eq_u32 s{sWV}, 3"); b(f"s_cselect_b32 s{sW0}, 0, {OOB}")
    b(f"v_and_b32 v{vST}, 15, v{vLANE}"); b(f"v_lshlrev_b32 v{vST}, 4, v{vST}")
    b(f"v_bfe_u32 v{vE}, v{vLANE}, 4, 1"); b(f"v_lshl_add_u32 v{vST}, v{vE}, 10, v{vST}")
    b(f"v_lshrrev_b32 v{vE}, 5, v{vLANE}"); b(f"v_lshl_add_u32 v{vST}, v{vE}, 8, v{vST}")
    b(f"s_lshl_b32 s{sT0}, s{sRB}, 2"); b(f"s_add_u32 s{sT0}, s{sT0}, s{sWV}"); b(f"s_lshl_b32 s{sT3}, s{sT0}, 11")
    b(f"v_add_u32 v{vST}, s{sT3}, v{vST}")
    b(f"s_lshl_b32 s{sFLO}, s{sT0}, 4"); b(f"s_add_u32 s{sFLO}, s{sFLO}, s{sCG}"); b(f"s_lshl_b32 s{sFLO}, s{sFLO}, 7")
    b.srd(S_A2, P_WS, 94 * A2_STEP)
    b.srd(S_B2, P_WS, 94 * B2_STEP, WS_B2)
    b.srd(S_F, P_WS, F_SIZE, WS_FLG)
    b.srd(S_OUT, P_OUT, 2048 * 640 * 4)
    sel_setup(b)
    flag_setup(b)
    if OPT['pf'] and OPT['order'] >= 2: b.add(xi, wi)
    b(f"s_cmp_ge_u32 s{sCG}, 11")
    b("s_cbranch_scc1 L_ssm")
    return b

def frag_addr_setup(b):
    b(f"v_and_b32 v{vE+2}, 31, v{vLANE}"); b(f"v_lshlrev_b32 v{vE+2}, 7, v{vE+2}")
    b(f"v_bfe_u32 v{vE}, v{vLANE}, 1, 3")
    b(f"v_lshrrev_b32 v{vE+1}, 5, v{vLANE}")
    b(f"v_xor_b32 v{vE}, v{vE}, v{vE+1}")
    b(f"s_lshl_b32 s{sT0}, s{sT0}, 1")
    b(f"v_xor_b32 v{vE}, s{sT0}, v{vE}")
    for k in range(4):
        b(f"v_xor_b32 v{vE+1}, {2*k}, v{vE}")
        b(f"v_lshl_add_u32 v{vXR+k}, v{vE+1}, 4, v{vE+2}")

def sel_setup(b):
    b(f"v_lshrrev_b32 v{vE}, 2, v{vLANE}"); b(f"v_lshrrev_b32 v{vE+1}, 4, v{vLANE}")
    b(f"v_xor_b32 v{vE}, v{vE}, v{vE+1}"); b(f"v_and_b32 v{vE}, 1, v{vE}")
    b(f"v_cmp_eq_u32 vcc, 0, v{vE}")
    b(f"v_mov_b32 v{vE+1}, 0x3f803f80")
    b(f"v_cndmask_b32 v{vSEL}, 0, v{vE+1}, vcc")
    for i in range(1, 4): b(f"v_mov_b32 v{vSEL+i}, v{vSEL}")

def flag_setup(b):
    b(f"s_and_b32 s{sRB2}, s2, 1"); b(f"s_bfe_u32 s{sT0}, s2, 0x10001"); b(f"s_lshl1_add_u32 s{sRB2}, s{sRB2}, s{sT0}")
    b(f"s_bfe_u32 s{sT0}, s2, 0x20003"); b(f"s_lshl2_add_u32 s{sRB2}, s{sRB2}, s{sT0}")
    b(f"s_mul_i32 s{sT0}, s{sT0}, 1280")
    b(f"v_mul_u32_u24 v{vE}, 26, v{vLANE}"); b(f"v_lshrrev_b32 v{vE}, 8, v{vE}")
    b(f"v_mul_u32_u24 v{vE}, {8*B2_STEP - 1280}, v{vE}"); b(f"v_lshl_add_u32 v{vE}, v{vLANE}, 7, v{vE}"); b(f"v_add_u32 v{vE}, s{sT0}, v{vE}")
    b(f"v_cmp_gt_u32 vcc, 60, v{vLANE}"); b(f"v_mov_b32 v{vE+1}, {OOB}"); b(f"v_cndmask_b32 v{vBPF}, v{vE+1}, v{vE}, vcc")
    b(f"s_bfe_u32 s{sKH}, s2, 0x10002")
    b(f"s_lshr_b32 s{sC2}, s2, 5"); b(f"s_lshl_b32 s{sT0}, s{sC2}, 8"); b(f"s_lshl3_add_u32 s{sC2}, s{sKH}, s{sC2}")
    b(f"v_lshrrev_b32 v{vE}, 1, v{vLANE}"); b(f"v_lshl_add_u32 v{vE}, v{vE}, 18, s{sT0}")
    b(f"v_and_b32 v{vE+1}, 1, v{vLANE}"); b(f"v_lshl_add_u32 v{vAPF}, v{vE+1}, 7, v{vE}")
    b(f"s_lshl2_add_u32 s{sT3}, s{sRB2}, s{sWV}"); b(f"s_lshl_b32 s{sT3}, s{sT3}, 11")
    b(f"v_and_b32 v{vFLO}, 15, v{vLANE}")
    b(f"v_cmp_gt_u32 s[{sMASK}:{sMASK+1}], 11, v{vFLO}")
    b(f"v_lshl_add_u32 v{vFLO}, v{vFLO}, 7, s{sT3}")
    b(f"s_lshl_b32 s{sT0}, s{sKH}, 17"); b(f"s_add_u32 s{sA2O}, s{sT3}, s{sT0}"); b(f"s_mov_b32 s{sA2B}, s{sA2O}")
    b(f"s_lshl_b32 s{sT0}, s{sKH}, 10"); b(f"v_add_u32 v{vA}, s{sT0}, v{vL16}"); b(f"v_xor_b32 v{vA+1}, 1024, v{vA}")
    b(f"s_and_b32 s{sT2}, s{sC2}, 7"); b(f"s_mul_i32 s{sB2O}, s{sT2}, 5120")
    b(f"s_lshl_b32 s{sT0}, s{sWV}, 1"); b(f"s_add_u32 s{sT0}, s{sT0}, s{sKH}"); b(f"s_mul_i32 s{sT1}, s{sT0}, {B2_STEP}")
    b(f"s_add_u32 s{sB2O}, s{sB2O}, s{sT1}"); b(f"s_lshl_b32 s{sT1}, s{sKH}, 12"); b(f"s_add_u32 s{sB2O}, s{sB2O}, s{sT1}")
    b(f"s_mul_i32 s{sBD}, s{sKH}, -2048")
    b(f"s_mul_i32 s{sM0B}, s{sWV}, 5120")
    b(f"v_lshrrev_b32 v{vE}, 1, v{vLANE}"); b(f"v_min_u32 v{vE}, 11, v{vE}")
    b(f"v_lshl_add_u32 v{vE}, v{vE}, 3, s{sT0}"); b(f"v_min_u32 v{vE}, 93, v{vE}")
    b(f"v_cmp_gt_u32 vcc, 54, v{vE}")
    b(f"v_and_b32 v{vE+1}, -2, v{vE}"); b(f"v_cndmask_b32 v{vE}, v{vE+1}, v{vE}, vcc")
    b(f"s_mul_i32 s{sT0}, s{sT2}, 5"); b(f"s_lshr_b32 s{sT0}, s{sT0}, 2"); b(f"s_lshl_b32 s{sT2}, s{sT2}, 1")
    b(f"v_mov_b32 v{vE+1}, s{sT2}"); b(f"v_mov_b32 v{vE+2}, s{sT0}"); b(f"v_cndmask_b32 v{vE+1}, v{vE+1}, v{vE+2}, vcc")
    b(f"v_lshl_add_u32 v{vE}, v{vE}, 4, v{vE+1}"); b(f"v_and_b32 v{vE+1}, 1, v{vLANE}"); b(f"v_add_u32 v{vE}, v{vE}, v{vE+1}")
    b(f"v_lshlrev_b32 v{vE}, 7, v{vE}"); b(f"v_add_u32 v{vBFO}, {F_BF}, v{vE}")

def tok_setup(b):
    b("s_waitcnt lgkmcnt(0)")
    b(f"s_mul_i32 s{sTOK}, s{sTOK}, 0x9E3779B1"); b(f"s_add_u32 s{sTOK}, s{sTOK}, 0x85EBCA6B")
    b(f"s_or_b32 s{sTOK}, s{sTOK}, 0x101")

def flag_store(level, tmp):
    b = B()
    b(f"v_mov_b32 v{tmp}, s{sTOK}")
    b(f"buffer_store_dword v{tmp}, off, {srd(S_F)}, s{sFLO} offset:{4*(level-1)} sc1")
    return b.l

def bf_store(tmp):
    b = B()
    b(f"v_mov_b32 v{tmp}, s{sTOK}")
    b(f"buffer_store_dword v{tmp}, off, {srd(S_F)}, s{sBFO} sc1")
    return b.l

def bf16_round(b, dst, src):
    b(f"v_cvt_pk_bf16_f32 v{dst}, v{src}, v{src}")
    b(f"v_and_b32 v{dst}, 0xffff0000, v{dst}")

def stats_final(time_of_row, E, glob=False):
    b = B()
    t = E + 4
    b(f"v_and_b32 v{t}, 3, v{vLANE}")
    b(f"v_cmp_eq_u32 vcc, 1, v{t}")
    b(f"v_cndmask_b32 v{vSQ}, v{vSQ}, v{vSQ+1}, vcc")
    b(f"v_cmp_eq_u32 vcc, 2, v{t}")
    b(f"v_cndmask_b32 v{vSQ}, v{vSQ}, v{vSQ+2}, vcc")
    b(f"v_cmp_eq_u32 vcc, 3, v{t}")
    b(f"v_cndmask_b32 v{vSQ}, v{vSQ}, v{vSQ+3}, vcc")
    b(f"v_mov_b32 v{vSQ+1}, v{vSQ}")
    b(f"v_mul_f32 v{vSUM}, {f32(1/640)}, v{vSUM}")
    b(f"v_permlane32_swap_b32 v{vSQ}, v{vSQ+1}")
    b(f"v_add_f32 v{vSQ}, v{vSQ}, v{vSQ+1}")
    b(f"v_mul_f32 v{vSQ}, {f32(1/640)}, v{vSQ}")
    b(f"v_fma_f32 v{vSQ}, -v{vSUM}, v{vSUM}, v{vSQ}")
    b(f"v_max_f32 v{vSQ}, 0, v{vSQ}")
    bf16_round(b, vSQ, vSQ)
    b(f"v_add_f32 v{vSQ}, {f32(1e-5)}, v{vSQ}")
    bf16_round(b, vSQ, vSQ)
    b(f"v_sqrt_f32 v{vSQ}, v{vSQ}")
    b(f"v_cvt_pk_bf16_f32 v{E+3}, -v{vSUM}, -v{vSUM}")
    bf16_round(b, E + 2, vSQ)
    b(f"v_rcp_f32 v{E+1}, v{E+2}")
    b(f"v_and_b32 v{E}, 0xffff0000, v{E+3}")
    b(f"v_xor_b32 v{E}, 0x80000000, v{E}")
    b(f"v_cmp_gt_u32 vcc, 32, v{vLANE}")
    b(f"v_cndmask_b32 v{E+3}, 0, v{E+3}, vcc")
    time_of_row(b, t)
    b(f"v_lshlrev_b32 v{t}, 3, v{t}")
    if glob:
        b(f"buffer_store_dwordx2 v[{E}:{E+1}], v{t}, {srd(S_F)}, s{sR3} offen sc1")
        return b.l
    b(f"s_lshl_b32 s{sT1}, s{sWV}, 8"); b(f"s_add_u32 s{sT1}, s{sT1}, {STAT}")
    b(f"v_add_u32 v{t}, s{sT1}, v{t}")
    b(f"ds_write_b64 v{t}, v[{E}:{E+1}]")
    return b.l

def cs_pack(b, dst, src, tmp):
    b(f"v_cvt_pk_bf16_f32 v{tmp}, v{src}, v{src}")
    b(f"v_and_b32 v{tmp}, 0xffff0000, v{tmp}")
    b(f"v_sub_f32 v{dst}, v{src}, v{tmp}")
    b(f"v_cvt_pk_bf16_f32 v{dst}, v{tmp}, v{dst}")

class P2:
    def __init__(self):
        self.free = deque(); self.loc = {}; self.na = 0; self.btok = {}
    def give(self, kind, lo, hi):
        for r in range(lo, hi, 4): self.free.append((kind, r))
    def rn(self, g): return f"{g[0]}[{g[1]}:{g[1]+3}]"
    def ld(self):
        g = self.free.popleft()
        i, m = divmod(self.na, 2); self.na += 1; self.loc[(i, m)] = g
        l = [I(f"buffer_load_dwordx4 {self.rn(g)}, v{vA+m}, {srd(S_A2)}, s{sA2O} offen sc1")]
        if m == 1: l.append(I(f"s_add_u32 s{sA2O}, s{sA2O}, {2*A2_STEP}"))
        return l
    def bdma(self, j):
        gs = []; self.btok[j] = []
        for n in range(5):
            l = []
            if n == 0:
                l.append(I(f"s_add_u32 s{sQ2}, s{sB2O}, {j*8*B2_STEP}"))
                l.append(I(f"s_add_u32 m0, s{sM0B}, {BSLOT(j)}"))
            else:
                l.append(I(f"s_add_u32 s{sQ2}, s{sQ2}, s{sBD}"))
            if n == 4:
                l.append(I(f"s_add_u32 s{sQ2}, s{sQ2}, 4096"))
                l.append(I(f"s_add_u32 m0, s{sM0B}, {BSLOT(j) + 4096}"))
            t = I(f"buffer_load_dwordx4 v{vL16}, {srd(S_B2)}, s{sQ2} offen offset:{1024*(n%4)} sc1 lds")
            l.append(t); self.btok[j].append(t); gs.append(l)
        return gs

KEEP = [(0, 0), (1, 0), (0, 1), (1, 1), (0, 2)]
SEND = [(1, 4), (0, 4), (1, 3), (0, 3), (1, 2)]

def phase2(b, P, plan, synced, extra_pins=()):
    ACC = 216; BR = 128; NBR = 8; RX = 160; T = 36
    vOUT, vLB1, vLB2 = T, T + 1, T + 2
    vTT = T + 4; vMR = T + 6; vX = T + 10; vD = T + 20; vBASE = 180; vCK = 200
    sO = [sSO[0], sSO[1], sSO[2], sSO[3], sCOL[0]]
    def acc(m, n): return ACC + 4 * (2 * n + m)
    q = B()
    q(f"s_lshl2_add_u32 s{sT0}, s{sRB2}, s{sWV}"); q(f"s_lshl_b32 s{sT3}, s{sT0}, 8"); q(f"s_add_u32 s{sT3}, s{sT3}, {F_ST}"); q(f"s_mul_i32 s{sT0}, s{sT0}, {32*2560}")
    q(f"s_and_b32 s{sT2}, s{sC2}, 7"); q(f"s_mul_i32 s{sT2}, s{sT2}, 320"); q(f"s_add_u32 s{sT0}, s{sT0}, s{sT2}")
    q(f"v_and_b32 v{vTT}, 15, v{vLANE}")
    q(f"s_lshl_b32 s{sT1}, s{sKH}, 7")
    q(f"v_lshl_add_u32 v{vMR}, v{vTT}, 3, s{sT1}"); q(f"v_xor_b32 v{vMR+2}, 128, v{vMR}")
    q(f"buffer_load_dwordx2 {p2(vMR)}, v{vMR}, {srd(S_F)}, s{sT3} offen sc1"); q(f"buffer_load_dwordx2 {p2(vMR+2)}, v{vMR+2}, {srd(S_F)}, s{sT3} offen sc1")
    q(f"v_mul_u32_u24 v{vOUT}, 2560, v{vTT}"); q(f"v_and_b32 v{vTT}, 48, v{vLANE}")
    q(f"v_add3_u32 v{vOUT}, v{vOUT}, v{vTT}, s{sT0}")
    q(f"v_lshrrev_b32 v{vTT+1}, 1, v{vOUT}")
    q(f"v_add_u32 v{vTT}, s{sT2}, v{vTT}"); q(f"v_lshrrev_b32 v{vTT}, 1, v{vTT}")
    q.srd(S_P1, P_DSK, 1280)
    for t, (m, n) in enumerate(KEEP):
        o0 = m * 40960 + n * 64; o1 = (1 - m) * 40960 + (4 - n) * 64
        q(f"s_mul_i32 s{sO[t]}, s{sKH}, {o1 - o0}"); q(f"s_add_u32 s{sO[t]}, s{sO[t]}, {o0}")
        q(f"s_lshr_b32 s{sT1}, s{sO[t]}, 1")
        q(f"buffer_load_dwordx2 {p2(vX+2*t)}, v{vTT+1}, {srd(S_X)}, s{sT1} offen")
        q(f"s_and_b32 s{sT1}, s{sT1}, 255")
        q(f"buffer_load_dwordx2 {p2(vD+2*t)}, v{vTT}, {srd(S_P1)}, s{sT1} offen")
    q(f"s_lshl_b32 s{sT0}, s{sRB2}, 4"); q(f"s_add_u32 s{sT0}, s{sT0}, s{sC2}"); q(f"s_lshl_b32 s{sT0}, s{sT0}, 2"); q(f"s_add_u32 s{sT0}, s{sT0}, s{sWV}")
    q(f"s_mul_i32 s{sXO}, s{sT0}, 5120"); q(f"s_add_u32 s{sXO}, s{sXO}, {F_XB}")
    q(f"s_xor_b32 s{sT0}, s{sT0}, 32"); q(f"s_mul_i32 s{sWO}, s{sT0}, 5120"); q(f"s_add_u32 s{sWO}, s{sWO}, {F_XB}")
    q(f"s_add_u32 s{sPX}, s{sXO}, 4096"); q(f"s_add_u32 s{sPW}, s{sWO}, 4096")
    for k in range(1, 4): q(f"s_lshr_b32 s{S_P0+k}, s{sTOK}, {8*k}")
    q(f"s_mov_b32 s{S_P0}, s{sTOK}")
    q(f"v_mov_b32 v{T+3}, 0xff")
    q2 = B()
    for t, (m, n) in enumerate(KEEP):
        for k in range(4):
            src = vX + 2 * t + k // 2; dsrc = vD + 2 * t + k // 2
            xv, tt, d = vBASE + 4 * t + k, vTT, vTT + 1
            if k % 2 == 0:
                q2(f"v_lshlrev_b32 v{xv}, 16, v{src}"); q2(f"v_lshlrev_b32 v{d}, 16, v{dsrc}")
            else:
                q2(f"v_and_b32 v{xv}, 0xffff0000, v{src}"); q2(f"v_and_b32 v{d}, 0xffff0000, v{dsrc}")
            q2(f"v_sub_f32 v{tt}, v{xv}, v{vMR+2*m}"); bf16_round(q2, tt, tt)
            q2(f"v_mul_f32 v{tt}, v{tt}, v{vMR+2*m+1}"); bf16_round(q2, tt, tt)
            q2(f"v_mul_f32 v{tt}, v{tt}, v{d}"); bf16_round(q2, tt, tt)
            q2(f"v_add_f32 v{xv}, v{xv}, v{tt}")
    b(f"v_add_u32 v{vLB1}, 65536, v{vL16}"); b(f"v_add_u32 v{vLB2}, 131072, v{vL16}")
    SK = OPT['sk']
    seq = []
    frags = []
    def addf(i, n, ms):
        frags.append((i, n))
        for m in ms: seq.append((i, m, n, len(frags) - 1))
    for i in range(47 - SK):
        for n in range(5): addf(i, n, (0, 1))
    for i in range(47 - SK, 47): addf(i, 4, (0, 1)); addf(i, 3, (0, 1)); addf(i, 2, (1,))
    send_end = len(seq) - 1
    for i in range(47 - SK, 47): addf(i, 0, (0, 1)); addf(i, 1, (0, 1)); addf(i, 2, (0,))
    NG = len(seq); assert NG == 470
    first_use = {}; last_a = {}
    for g, (i, m, n, f) in enumerate(seq):
        first_use.setdefault(f, g); last_a[(i, m)] = g
    LAF = 5
    rd = {}
    def fread(f):
        i, n = frags[f]
        ad = BSLOT(i // 4) + (i % 4) * 5120 + n * 1024
        vb = [vL16, vLB1, vLB2][ad >> 16]
        rd[f] = I(f"ds_read_b128 {v(BR + 4*(f % NBR),4)}, v{vb} offset:{ad & 0xffff}")
        return rd[f]
    pins = [[] for _ in range(NG)]
    synced = set(synced)
    def sync_for(j, out):
        cover = [j] if j < 7 else [jj for jj in ((7, 8) if j < 9 else (9, 10, 11))]
        toks = []
        for jj in cover:
            if jj not in synced: toks += P.btok[jj]; synced.add(jj)
        out.append(W(toks)); out.append(I("s_barrier"))
    head = []
    if 0 not in synced: sync_for(0, head)
    for f in range(LAF): head.append(fread(f))
    b.add(head)
    items = deque()
    for p in plan:
        if p[0] == 'A': items.extend([('A',)] * p[1])
        else: items.append(p)
    busy = [0] * NG
    mf = []
    seen_chunk = {0}
    for g in range(NG):
        i, m, n, f = seq[g]
        assert (i, m) in P.loc, (g, i, m)
        d = acc(m, n)
        mf.append(I(f"v_mfma_f32_16x16x32_bf16 {v(d,4)}, {v(BR + 4*(f % NBR),4)}, {P.rn(P.loc[(i,m)])}, {'0' if i == 0 else v(d,4)}"))
        if last_a[(i, m)] == g: P.free.append(P.loc[(i, m)])
        if first_use[f] == g and f + LAF < len(frags):
            j = frags[f + LAF][0] // 4
            if j not in seen_chunk:
                seen_chunk.add(j)
                if j not in synced or j + 6 <= 11:
                    sync_for(j, pins[g])
                    if j + 6 <= 11:
                        for k, grp in enumerate(P.bdma(j + 6)):
                            pins[g + 13 + 4 * k] += grp; busy[g + 13 + 4 * k] = 1
                if j % 2 == 0: pins[g] += stamp_ins(f"p{j}", 2 if j in (6,) else 1)
                if j != 6: pins[g] += stamp_ins(f"p{j}", 3)
            pins[g].append(fread(f + LAF))
        elif items and not busy[g]:
            p = items[0]
            if p[0] == 'A':
                if P.free: pins[g] += P.ld(); items.popleft()
            elif g >= p[2]:
                pins[g] += p[1]; items.popleft()
    assert not items, items
    sb_ = B()
    for t, (m, n) in enumerate(SEND):
        d = acc(m, n)
        for k in range(4): sb_(f"v_bfi_b32 v{d+k}, v{T+3}, s{S_P0+k}, v{d+k}")
        sb_(f"buffer_store_dwordx4 {v(d,4)}, v{vL16}, {srd(S_F)}, s{sXO if t < 4 else sPX} offen offset:{1024*(t%4)} sc1")
    def rx_issue(bb):
        for t in range(5): bb(f"buffer_load_dwordx4 {v(RX+4*t,4)}, v{vL16}, {srd(S_F)}, s{sWO if t < 4 else sPW} offen offset:{1024*(t%4)} sc1")
    def rx_check(bb):
        for k in range(4):
            bb(f"v_xor_b32 v{vCK+k}, s{S_P0+k}, v{RX+k}")
            for t in range(1, 5): bb(f"v_bitop3_b32 v{vCK+k}, v{vCK+k}, v{RX+4*t+k}, s{S_P0+k} bitop3:0xf6")
        bb(f"v_or3_b32 v{vCK}, v{vCK}, v{vCK+1}, v{vCK+2}")
        bb(f"v_bitop3_b32 v{vCK}, v{vCK}, v{vCK+3}, v{T+3} bitop3:0xa8")
        bb(f"v_cmp_ne_u32 vcc, 0, v{vCK}")
        bb("s_cmp_lg_u64 vcc, 0")
    tq = B()
    tq(f"s_cmp_eq_u32 s2, 0"); tq(f"s_cselect_b32 s{sG}, s{sW0}, {OOB}")
    tq(f"v_and_b32 v{vCK+8}, 15, v{vLANE}"); tq(f"v_lshlrev_b32 v{vCK+8}, 7, v{vCK+8}")
    tq(f"v_lshrrev_b32 v{vCK+9}, 4, v{vLANE}"); tq(f"v_lshl_add_u32 v{vCK+8}, v{vCK+9}, 13, v{vCK+8}")
    def tk_issue(bb):
        for k in range(4):
            bb(f"s_add_u32 s{sQ0}, s{sG}, {32768*k}")
            bb(f"buffer_load_dword v{vCK+4+k}, v{vCK+8}, {srd(S_F)}, s{sQ0} offen sc1")
    def tk_check(bb):
        for k in range(4): bb(f"v_xor_b32 v{vCK+4+k}, s{sTOK}, v{vCK+4+k}")
        bb(f"v_or3_b32 v{vCK+4}, v{vCK+4}, v{vCK+5}, v{vCK+6}"); bb(f"v_or_b32 v{vCK+4}, v{vCK+4}, v{vCK+7}")
        bb(f"v_cmp_ne_u32 vcc, 0, v{vCK+4}")
        bb(f"s_cmp_eq_u32 s{sG}, 0"); bb("s_cselect_b64 vcc, vcc, 0"); bb("s_cmp_lg_u64 vcc, 0")
    tk_issue(tq)
    st = Stream()
    for g in range(NG):
        st.add(mf[g]); st.pin(g, *pins[g])
    for (g, l) in extra_pins: st.pin(g, *l)
    st.pin(send_end + 2, *stamp_ins('snd', 2))
    st.queue(sb_.l, send_end + 2, send_end + 12, name='send')
    ri = B(); rx_issue(ri)
    st.pin(min(send_end + 12 + OPT['xd'], NG - 1), *ri.l, *tq.l)
    st.queue(q.l, 20, 150, name='base0', rate=1)
    st.queue(q2.l, 170, send_end, name='base1', rate=1)
    b.add(st.schedule())
    stamp(b, 'pe', 2)
    for t, (m, n) in enumerate(KEEP):
        for h in range(2):
            r0 = acc(m, n) + 2 * h
            b(f"v_pk_add_f32 {p2(r0)}, {p2(r0)}, {p2(vBASE+4*t+2*h)}")
    slow_loop(b, rx_issue, rx_check, 1)
    stamp(b, 'rx', 2)
    for t, (m, n) in enumerate(KEEP):
        for h in range(2):
            r0 = acc(m, n) + 2 * h
            b(f"v_pk_add_f32 {p2(r0)}, {p2(r0)}, {p2(RX+4*t+2*h)}")
        b(f"buffer_store_dwordx4 {v(acc(m,n),4)}, v{vOUT}, {srd(S_OUT)}, s{sO[t]} offen")
    slow_loop(b, tk_issue, tk_check, 2)
    b(f"s_add_u32 s{sT0}, s{sG}, {F_T}")
    b(f"v_mov_b32 v{vT0}, s{sTOK}")
    b(f"buffer_store_dword v{vT0}, off, {srd(S_F)}, s{sT0} sc1")
    if OPT['stamps']:
        b("s_waitcnt vmcnt(0)")
        stamp(b, 'fin', 2)
        b("s_memrealtime s[30:31]")
        b("s_waitcnt lgkmcnt(0)")
        stamp(b, 'end', 2)
        b(f"v_writelane_b32 v0, s30, 63")
        b(f"v_writelane_b32 v0, s8, 62")
        b(f"s_lshl_b32 s{sT0}, s2, 2"); b(f"s_add_u32 s{sT0}, s{sT0}, s{sWV}"); b(f"s_lshl_b32 s{sT0}, s{sT0}, 8")
        b(f"s_add_u32 s{sT0}, s{sT0}, {F_TS}")
        b(f"v_lshlrev_b32 v{vT0}, 2, v{vLANE}")
        b(f"buffer_store_dword v0, v{vT0}, {srd(S_F)}, s{sT0} offen")
        if OPT['dbgts']:
            b.srd(S_P0, P_DBG, 256)
            b(f"v_readlane_b32 s{sT1}, v0, 0"); b(f"v_subrev_u32 v0, s{sT1}, v0")
            b(f"s_sub_u32 s30, s30, s8"); b(f"v_writelane_b32 v0, s30, 0")
            b(f"s_cmp_eq_u32 s2, {OPT['dbgts']-1}"); b(f"s_cselect_b32 s{sT0}, s{sW0}, {OOB}")
            b(f"buffer_store_dword v0, v{vT0}, {srd(S_P0)}, s{sT0} offen")
    b("s_endpgm")

GK1 = -2.0 * math.sqrt(2.0 / math.pi) * math.log2(math.e)
GK2 = GK1 * 0.044715

def ffn_epilogue(acc, so, tmp):
    b = B()
    for p in range(0, 8, 2):
        g = [acc + p, acc + p + 1]; u = [acc + 8 + p, acc + 9 + p]
        t = [tmp + 4 + (p % 4), tmp + 5 + (p % 4)]
        for k in range(2): b(f"v_mul_f32 v{t[k]}, v{g[k]}, v{g[k]}")
        for k in range(2): b(f"v_fma_f32 v{t[k]}, v{t[k]}, v{vK2}, v{vK1}")
        for k in range(2): b(f"v_mul_f32 v{t[k]}, v{g[k]}, v{t[k]}")
        for k in range(2): b(f"v_exp_f32 v{t[k]}, v{t[k]}")
        for k in range(2): b(f"v_mul_f32 v{u[k]}, v{g[k]}, v{u[k]}")
        for k in range(2): b(f"v_fma_f32 v{t[k]}, v{t[k]}, v{vKC}, v{vKC}")
        for k in range(2): b(f"v_rcp_f32 v{t[k]}, v{t[k]}")
        b(f"v_mul_f32 v{u[0]}, v{u[0]}, v{t[0]}")
        b(f"v_mul_f32 v{u[1]}, v{u[1]}, v{t[1]}")
        b(f"v_cvt_pk_bf16_f32 v{tmp + p//2}, v{u[0]}, v{u[1]}")
    tok = b(f"buffer_store_dwordx4 {v(tmp,4)}, v{vST}, {srd(S_A2)}, s{so} offen sc1")
    return b.l, tok

def interleave(main, extra, every):
    out = []; k = 0
    for n, i in enumerate(main):
        out.append(i)
        if n % every == every - 1 and k < len(extra): out += extra[k]; k += 1
    for e in extra[k:]: out += e
    return out

def ffn_path():
    b = B()
    vRP = 55; vRD = [26, 56]
    xi, xt, wi, wt = {}, {0: HEAD['xt0']}, {}, {0: HEAD['wt0']}
    CH = [(sb, c) for sb in range(3) for c in range(10 if sb < 2 else 5)]
    for cc, (sb, c) in enumerate(CH):
        if cc: wi[cc], wt[cc] = w_dma(cc, vWD if sb < 2 else None, 64 * 3456 if sb < 2 else 8192, sCOL[sb] if c == 0 else None)
    for c in range(1, 10): xi[c], xt[c] = x_dma(c)
    b(f"s_lshr_b32 s{sT0}, s{sWV}, 1")
    frag_addr_setup(b)
    for k in range(4): b(f"v_add_u32 v{vXR+k}, s{sM0X}, v{vXR+k}")
    mat, hh, r0, pc = vE, vE + 1, vE + 2, vE + 3
    b(f"v_bfe_u32 v{mat}, v{vLANE}, 4, 1"); b(f"v_lshrrev_b32 v{hh}, 5, v{vLANE}"); b(f"v_bfe_u32 v{r0}, v{vLANE}, 2, 2")
    b(f"v_and_b32 v{pc}, 1, v{vLANE}"); b(f"v_lshlrev_b32 v{pc}, 4, v{pc}")
    b(f"v_bfe_u32 v{vE+4}, v{vLANE}, 1, 1"); b(f"v_lshl_add_u32 v{pc}, v{vE+4}, 3, v{pc}")
    b(f"v_lshl_add_u32 v{pc}, v{mat}, 13, v{pc}")
    b(f"v_lshl_add_u32 v{hh}, v{hh}, 3, v{r0}")
    b(f"v_lshrrev_b32 v{r0}, 1, v{r0}"); b(f"v_lshl_add_u32 v{r0}, v{mat}, 1, v{r0}")
    b(f"v_lshl_add_u32 v{vE+4}, v{hh}, 7, v{pc}")
    b(f"v_lshl_add_u32 v{vE+5}, v{hh}, 6, v{pc}")
    b(f"s_lshr_b32 s{sT1}, s{sWV}, 1")
    for j in range(4):
        b(f"s_add_u32 s{sT0}, s{sWV}, {j}"); b(f"s_and_b32 s{sT0}, s{sT0}, 3")
        b(f"v_xor_b32 v{vE+6}, s{sT0}, v{r0}")
        b(f"v_lshl_add_u32 v{vE+6}, v{vE+6}, 5, v{vE+4}")
        for par in range(2):
            b(f"s_xor_b32 s{sT2}, s{sT1}, {par}"); b(f"s_lshl_b32 s{sT2}, s{sT2}, 11")
            b(f"v_add_u32 v{vWR+2*j+par}, s{sT2}, v{vE+6}")
        b(f"s_lshr_b32 s{sT2}, s{sT0}, 1"); b(f"s_lshl_b32 s{sT3}, s{sCG}, 1"); b(f"s_add_u32 s{sT2}, s{sT2}, s{sT3}")
        b(f"s_lshl_b32 s{sT2}, s{sT2}, 17"); b(f"s_and_b32 s{sT0}, s{sT0}, 1"); b(f"s_lshl_b32 s{sT0}, s{sT0}, 9")
        b(f"s_add_u32 s{sSO[j]}, s{sT2}, s{sT0}")
    for j in range(2):
        b(f"s_and_b32 s{sT0}, s{sWV}, 1"); b(f"s_xor_b32 s{sT0}, s{sT0}, {j}")
        b(f"v_xor_b32 v{vE+6}, s{sT0}, v{mat}")
        b(f"v_lshl_add_u32 v{vE+6}, v{vE+6}, 5, v{vE+5}")
        for par in range(2):
            b(f"s_xor_b32 s{sT2}, s{sT1}, {par}"); b(f"s_lshl_b32 s{sT2}, s{sT2}, 10")
            b(f"v_add_u32 v{vWR2+2*j+par}, s{sT2}, v{vE+6}")
    b(f"s_and_b32 s{sT0}, s{sWV}, 2")
    b(f"v_and_b32 v{vE}, 3, v{vLANE}"); b(f"v_xor_b32 v{vE}, s{sT0}, v{vE}"); b(f"v_lshlrev_b32 v{vE}, 4, v{vE}")
    b(f"v_lshrrev_b32 v{vE+1}, 2, v{vLANE}"); b(f"v_mul_u32_u24 v{vE+1}, 3456, v{vE+1}"); b(f"v_add_u32 v{vRP}, v{vE}, v{vE+1}")
    b(f"s_and_b32 s{sT2}, s{sWV}, 1"); b(f"s_and_b32 s{sT1}, s{sCG}, 1"); b(f"s_lshl1_add_u32 s{sT1}, s{sT1}, s{sT2}")
    b(f"s_lshl2_add_u32 s{sT1}, s{sRB}, s{sT1}"); b(f"s_sub_u32 s{sT1}, 63, s{sT1}")
    b(f"s_and_b32 s{sT0}, s{sCG}, -2"); b(f"s_min_u32 s{sT0}, s{sT0}, 8")
    b(f"s_mul_i32 s{sR0}, s{sT0}, 320"); b(f"s_mul_i32 s{sT3}, s{sT1}, {16*3456}"); b(f"s_add_u32 s{sR0}, s{sR0}, s{sT3}"); b(f"s_add_u32 s{sR0}, s{sR0}, 256")
    b(f"s_lshr_b32 s{sT3}, s{sWV}, 1")
    b(f"s_lshl1_add_u32 s{sR1}, s{sT0}, s{sT3}"); b(f"s_mul_i32 s{sR1}, s{sR1}, 40"); b(f"s_add_u32 s{sR1}, s{sR1}, s{sT1}")
    b(f"s_lshl_b32 s{sR1}, s{sR1}, 10"); b(f"s_add_u32 s{sR1}, s{sR1}, {F_W2}")
    b(f"s_add_u32 s{sT0}, s{sT0}, s{sT3}"); b(f"s_mul_i32 s{sT0}, s{sT0}, 5120"); b(f"s_add_u32 s{sT0}, s{sT0}, {F_WF}")
    b(f"s_lshl_b32 s{sR2}, s{sT1}, 7"); b(f"s_add_u32 s{sR2}, s{sR2}, s{sT0}")
    b(f"s_cmp_eq_u32 s{sCG}, 10"); b(f"s_cselect_b32 s{sT1}, 63, s{sT1}")
    b(f"s_cmp_ge_u32 s{sT1}, 40"); b(f"s_cselect_b32 s{sR0}, {OOB}, s{sR0}"); b(f"s_cselect_b32 s{sR1}, {OOB}, s{sR1}"); b(f"s_cselect_b32 s{sR2}, {OOB}, s{sR2}")
    b(f"s_lshl_b32 s{sT2}, s{sT2}, 9"); b(f"s_add_u32 s{sT0}, s{sT0}, s{sT2}")
    b(f"v_bfe_u32 v{vE}, v{vLANE}, 2, 3"); b(f"v_min_u32 v{vE}, 4, v{vE}"); b(f"v_and_b32 v{vE+1}, 3, v{vLANE}"); b(f"v_lshl_add_u32 v{vE}, v{vE}, 3, v{vE+1}")
    b(f"v_lshl_add_u32 v{vE+1}, v{vE}, 7, s{sT0}")
    b(f"v_cmp_gt_u32 vcc, 32, v{vLANE}"); b(f"v_cndmask_b32 v{vBFO}, v{vE+1}, v{vBFO}, vcc")
    b(f"s_and_b32 s{sT0}, s{sRB}, 7"); b(f"s_lshl_b32 s{sT0}, s{sT0}, 7"); b(f"v_lshl_add_u32 v{vW2P}, v{vE}, 10, s{sT0}")
    b(f"s_lshl2_add_u32 s{sR3}, s{sRB}, s{sWV}"); b(f"s_lshl_b32 s{sR3}, s{sR3}, 8"); b(f"s_add_u32 s{sR3}, s{sR3}, {F_ST}")
    b(f"s_cmp_eq_u32 s{sCG}, 0"); b(f"s_cselect_b32 s{sR3}, s{sR3}, {OOB}")
    b.srd(S_P0, P_WD, 1728 * 1280)
    b(f"s_lshl_b32 s{sT0}, s{sRB}, 2"); b(f"s_add_u32 s{sT0}, s{sT0}, s{sWV}")
    b(f"s_mul_i32 s{sT1}, s{sT0}, 205"); b(f"s_lshr_b32 s{sT1}, s{sT1}, 11")
    b(f"s_mul_i32 s{sT2}, s{sT1}, 10"); b(f"s_sub_u32 s{sT0}, s{sT0}, s{sT2}")
    b(f"s_lshl_b32 s{sT2}, s{sT1}, 6"); b(f"s_add_u32 s{sT2}, s{sT2}, s{sCOL[0]}")
    b(f"s_cmp_eq_u32 s{sT1}, 4"); b(f"s_cselect_b32 s{sT2}, s{sCOL[2]}, s{sT2}")
    b(f"s_mul_i32 s{sT2}, s{sT2}, 640")
    b(f"s_lshl_b32 s{sT3}, s{sT0}, 7"); b(f"s_add_u32 s{sT2}, s{sT2}, s{sT3}")
    b(f"s_lshl_b32 s{sT3}, s{sCG}, 1"); b(f"s_add_u32 s{sT3}, s{sT3}, s{sT1}")
    b(f"s_cmp_ge_u32 s{sT1}, 2"); b(f"s_cselect_b32 s{sQ0}, 20, 0"); b(f"s_add_u32 s{sT3}, s{sT3}, s{sQ0}")
    b(f"s_add_u32 s{sQ0}, s{sCG}, 44")
    b(f"s_cmp_eq_u32 s{sT1}, 4"); b(f"s_cselect_b32 s{sT3}, s{sQ0}, s{sT3}")
    b(f"s_lshl_b32 s{sBFO}, s{sT3}, 4"); b(f"s_add_u32 s{sBFO}, s{sBFO}, s{sT0}"); b(f"s_lshl_b32 s{sBFO}, s{sBFO}, 7"); b(f"s_add_u32 s{sBFO}, s{sBFO}, {F_BF}")
    b(f"s_mul_i32 s{sT3}, s{sT3}, {B2_STEP}"); b(f"s_lshl_b32 s{sT0}, s{sT0}, 12"); b(f"s_add_u32 s{sT3}, s{sT3}, s{sT0}")
    b(f"s_cmp_eq_u32 s{sCG}, 10"); b(f"s_addc_u32 s{sT1}, s{sT1}, 0")
    b(f"s_cmp_gt_u32 s{sT1}, 4"); b(f"s_cselect_b32 s{sQ1}, {OOB}, s{sT2}"); b(f"s_cselect_b32 s{sG}, {OOB}, s{sT3}")
    b(f"s_cselect_b32 s{sBFO}, {OOB}, s{sBFO}")
    b(f"s_lshr_b32 s{sT3}, s{sWV}, 1"); b(f"s_lshl1_add_u32 s{sT3}, s{sCG}, s{sT3}"); b(f"s_mul_i32 s{sT3}, s{sT3}, 40960")
    b(f"s_and_b32 s{sT2}, s{sWV}, 1"); b(f"s_lshl_b32 s{sT2}, s{sT2}, 12"); b(f"s_add_u32 s{sT3}, s{sT3}, s{sT2}"); b(f"s_add_u32 s{sT3}, s{sT3}, {F_W2}")
    b(f"s_cmp_eq_u32 s{sCG}, 10"); b(f"s_cselect_b32 s{sCOL[2]}, {OOB}, s{sT3}")
    vPD = 54
    b(f"v_and_b32 v{vPD}, 7, v{vLANE}"); b(f"v_lshl_add_u32 v{vPD}, v{vPD}, 4, v{vT3}")
    b(f"v_lshrrev_b32 v{vE}, 4, v{vLANE}"); b(f"v_lshlrev_b32 v{vE}, 3, v{vE}")
    b(f"v_bfe_u32 v{vE+1}, v{vLANE}, 2, 2"); b(f"v_add_u32 v{vE}, v{vE}, v{vE+1}"); b(f"v_lshlrev_b32 v{vE}, 7, v{vE}")
    b(f"v_and_b32 v{vE+1}, 3, v{vLANE}"); b(f"v_lshl_add_u32 v{vE}, v{vE+1}, 3, v{vE}")
    b(f"v_add_u32 v{vPRE}, s{sM0X}, v{vE}")
    pb = B(); pb(f"s_add_u32 m0, s{sM0X}, {XS4}")
    pre_ld = []
    for i in range(4):
        pre_ld.append(pb(f"buffer_load_dwordx4 v{vPD}, {srd(S_P0)}, s{sQ1} offen offset:{1024*i} lds"))
        if i < 3: pb(f"s_add_u32 s{sQ1}, s{sQ1}, {10240-1024}")
    for h_ in range(2): pb(f"buffer_load_dwordx4 {v(vRD[h_],4)}, v{vRP}, {srd(S_W)}, s{sR0} offen offset:{64*h_}")
    pq = B(); pq.add(W(pre_ld)); pre_st = []
    for cb in range(4):
        for hf in range(2):
            pq(f"ds_read_b64_tr_b16 {p2(vE+4*cb+2*hf)}, v{vPRE} offset:{XS4 + cb*32 + hf*512}")
    pq(f"buffer_store_dwordx4 {v(vRD[0],4)}, v{vL16}, {srd(S_F)}, s{sR1} offen sc1")
    pq(f"s_add_u32 s{sR1}, s{sR1}, 81920")
    pq(f"buffer_store_dwordx4 {v(vRD[1],4)}, v{vL16}, {srd(S_F)}, s{sR1} offen sc1")
    for cb in range(4):
        pre_st.append(pq(f"buffer_store_dwordx4 {v(vE+4*cb,4)}, v{vL16}, {srd(S_B2)}, s{sG} offen offset:{1024*cb} sc1"))
    tok_setup(b)
    stamp(b, 'adr', 2)
    b.add(xi[1], wi[1])

    st = Stream()
    main = []; corr_at = {}; n = 0; first_gap = {}; sb_last = {}
    accb = [vACC, vACC + 64, vACC]
    for cc, (sb, c) in enumerate(CH):
        nblk = 4 if sb < 2 else 2; nks = 4 if sb < 2 else 8
        for ks in range(nks):
            kk = c * nks + ks
            if sb >= 1 and c == 1 and ks == (1 if sb < 2 else 2):
                corr_at[sb - 1] = len(st.m)
                for j in range(4):
                    d = accb[sb - 1] + 16 * j
                    st.add(I(f"v_mfma_f32_32x32x16_bf16 {v(d,16)}, {v(vQ,4)}, {v(vXM + 4*(j%2),4)}, {v(d,16)}"))
            for j in range(nblk):
                d = accb[sb] + 16 * j; fr = vFR + 4 * (n % NF)
                g = st.add(I(f"v_mfma_f32_32x32x16_bf16 {v(d,16)}, {v(fr,4)}, {a(4*kk,4)}, {'0' if kk == 0 else v(d,16)}"))
                main.append((g, sb, cc, ks, j, kk)); n += 1
                if ks == 0 and j == 0: first_gap[cc] = len(main) - 1
                if j == 0 and (sb < 2 or ks % 2 == 0):
                    cs = vCS + 4 * (sb % 2)
                    st.add(I(f"v_mfma_f32_16x16x32_bf16 {v(cs,4)}, {v(vSEL,4)}, {v(fr,4)}, {'0' if kk == 0 else v(cs,4)}"))
                if sb == 0 and j == 1:
                    st.add(I(f"v_mfma_f32_16x16x32_bf16 {v(vSUM,4)}, {v(vSEL,4)}, {a(4*kk,4)}, {'0' if kk == 0 else v(vSUM,4)}"))
                if sb == 0 and j >= 2:
                    xr = a(4 * kk + 2 * (j - 2), 2)
                    st.add(I(f"v_mfma_f32_4x4x4_16b_bf16 {v(vSQ,4)}, {xr}, {xr}, {'0' if (kk == 0 and j == 2) else v(vSQ,4)}"))
            sb_last[sb] = len(st.m) - 1
    def wread(idx):
        g, sb, cc, ks, j, kk = main[idx]
        fr = vFR + 4 * (idx % NF); slot = (cc % NSLOT) * 16384
        if sb < 2: ad = vWR + 2 * j + (ks & 1); off = slot + (ks >> 1) * 4096; hs = 512
        else: ad = vWR2 + 2 * j + (ks & 1); off = slot + (ks >> 1) * 2048; hs = 256
        return [I(f"ds_read_b64_tr_b16 v[{fr}:{fr+1}], v{ad} offset:{off}"), I(f"ds_read_b64_tr_b16 v[{fr+2}:{fr+3}], v{ad} offset:{off+hs}")]
    xrd = {}
    def xread(kk):
        xrd[kk] = I(f"ds_read_b128 {a(4*kk,4)}, v{vXR + kk % 4} offset:{((kk // 4) % NX) * 4096}")
        return xrd[kk]
    b.add(W(xt[0], wt[0])); b("s_barrier"); stamp(b, 'c0', 2)
    b.add(xread(0))
    for idx in range(LA): b.add(wread(idx))
    def G(cc, k):
        return main[min(max(first_gap[cc] - LA, 0) + k, len(main) - 1)][0]
    def spread(cc, k0, groups):
        for k, grp in enumerate(groups): st.pin(G(cc, k0 + k), *(grp if isinstance(grp, list) else [grp]))
    P = P2()
    P.give('a', 160, 252)
    cs_wr = {}
    bfi, bfc = poll_pair(bf_issue('ffw'), bf_check('ffw'), 'bf')
    a1i, a1c = poll_pair(af_issue(1), af_check('ffn'), 'a1')
    def pairs(l): return [l[k:k+2] for k in range(0, len(l), 2)]
    spread(0, 1, pairs(xi[2] + wi[2] + xi[3] + wi[3]))
    if OPT['pf'] and OPT['order'] == 3: st.pin(G(1, 0), *HEAD['pfb'].l)
    PRC = 6
    for idx in range(len(main)):
        g, sb, cc, ks, j, kk = main[idx]
        t = idx + LA
        if t < len(main):
            g2, sb2, cc2, ks2, j2, kk2 = main[t]
            if first_gap[cc2] == t:
                toks = list(wt[cc2])
                if sb2 == 0: toks += xt[cc2]
                if CH[cc2][1] == 1 and sb2 >= 1:
                    cs_wr[sb2 - 1] = [I(f"ds_write2st64_b32 v{vT2}, v{vT3}, v{vT3} offset0:0 offset1:4")]
                    toks += cs_wr[sb2 - 1]
                st.pin(g, W(toks), I("s_barrier"), *stamp_ins(f"c{cc2}", 2 if cc2 in (10, 20) else 1))
                nxt = []
                if cc2 + 3 < len(CH): nxt += wi[cc2 + 3]
                if sb2 == 0 and cc2 + 3 < 10:
                    nxt += [[W([xrd[4 * (cc2 - 1) + q] for q in range(4)]), xi[cc2 + 3][0]]] + xi[cc2 + 3][1:]
                spread(cc2, 2, nxt)
                if CH[cc2][1] == 1 and sb2 >= 1:
                    st.pin(main[idx + 1][0], I(f"ds_read2st64_b32 v[{vQ}:{vQ+1}], v{vT2} offset0:0 offset1:1"),
                           I(f"ds_read2st64_b32 v[{vQ+2}:{vQ+3}], v{vT2} offset0:2 offset1:3"))
                if cc2 == PRC:
                    if OPT['pf']: st.pin(G(PRC, 14), pf_ins(vPW, S_W, f"s{sCOL[1]}"))
                    st.pin(G(PRC, 15), *pb.l)
                if cc2 == 12: st.pin(G(12, 10), W(pre_st), *bf_store(vT0), I(f"buffer_store_dword v{vT0}, off, {srd(S_F)}, s{sR2} sc1"))
                if cc2 == 14: st.pin(G(14, 11), *bfi)
                if cc2 == 15:
                    st.pin(G(15, 12), *bfc)
                    st.pin(G(15, 13), I("s_mov_b32 exec_lo, 0"), pf_ins(vW2P, S_F, f"s{sCOL[2]}", " sc1"), I("s_mov_b32 exec_lo, -1"))
                    st.pin(G(15, 14), *b_pf(0))
                if 17 <= cc2 <= 20: spread(cc2, 10, P.bdma(cc2 - 17))
                if cc2 == 21: st.pin(G(21, 10), *a1i)
                if cc2 == 22: st.pin(G(22, 6), *a1c); st.pin(G(22, 7), *a_pf(0, 11))
                if cc2 >= 23: spread(cc2, 5 if cc2 == 23 else 2, [P.ld() for _ in range(11)])
            if sb2 == 0 and j2 == 0: st.pin(g, xread(kk2))
            st.pin(g, *wread(t))
    st.queue(pq.l, G(9, 2), G(10, 0), name='pre')
    def trow(bb, t): bb(f"v_and_b32 v{t}, 31, v{vLANE}")
    store_toks = {0: [], 1: [], 2: []}
    for sb in range(2):
        q = B()
        q(f"s_lshl_b32 s{sT2}, s{sWV}, 8"); q(f"s_add_u32 s{sT2}, s{sT2}, {CSX}")
        q(f"v_lshl_add_u32 v{vT2}, v{vLANE}, 2, s{sT2}")
        cs_pack(q, vT3, vCS + 4 * (sb % 2), vT1)
        q.add(cs_wr[sb])
        bar_gap = main[first_gap[10 * (sb + 1) + 1] - LA][0]
        st.queue(q.l, sb_last[sb] + 2, bar_gap - 1, name=f"cs{sb}")
        q = B()
        if sb == 0:
            q.add(stats_final(trow, vE, True))
            q(f"v_mul_f32 v{vK1}, {f32(GK1)}, v{vE+1}")
            q(f"v_mul_f32 v{vK2}, v{vE+1}, v{vE+1}"); q(f"v_mul_f32 v{vK2}, v{vK2}, v{vE+1}"); q(f"v_mul_f32 v{vK2}, {f32(GK2)}, v{vK2}")
            q(f"v_mul_f32 v{vKC}, v{vE+2}, v{vE+2}")
            q(f"v_mov_b32 v{vSUM}, v{vE+3}")
        for k in range(8): q(f"v_mov_b32 v{vXM+k}, {'v%d' % vSUM if k in (0, 5) else 0}")
        st.queue(q.l, sb_last[sb] + 2, corr_at[sb] - 1, name=f"st{sb}")
        ca = corr_at[sb]
        st.pin(ca + 0, I(f"v_mov_b32 v{vXM}, 0"), I(f"v_mov_b32 v{vXM+2}, v{vSUM}"))
        st.pin(ca + 1, I(f"v_mov_b32 v{vXM+5}, 0"), I(f"v_mov_b32 v{vXM+7}, v{vSUM}"))
        q = B()
        for j in range(4):
            if sb == 1: q(f"s_add_u32 s{sSO[j]}, s{sSO[j]}, {22*A2_STEP}")
            l, tok = ffn_epilogue(accb[sb] + 16 * j, sSO[j], vE + 10 * (j % 2))
            q.add(l); store_toks[sb].append(tok)
        dl = G(18, 0) if sb == 0 else sb_last[2]
        st.queue(q.l, ca + 4, dl, name=f"ep{sb}")
        if sb == 0: st.pin(G(19, 8), W(store_toks[0]), *flag_store(1, vT0))
    b.add(st.schedule(lambda g, mf: mf.passes * 4 - 8 - (2 if mf.passes == 8 else 0)))
    print("FFN stream: gaps", len(st.m), "overflow cycles", st.over, {q['name']: q['done_gap'] for q in st.queues}, sb_last, file=sys.stderr)
    stamp(b, 'm1', 2)
    P.give('a', 0, 160)
    bsi, bsc = poll_pair(bf_issue('all'), bf_check('all'), 'bs')
    b.add(bsi)
    cs_pack(b, vT3, vCS, vT1)
    b(f"ds_write2st64_b32 v{vT2}, v{vT3}, v{vT3} offset0:0 offset1:4")
    for k in range(8): b(f"v_mov_b32 v{vXM+k}, {'v%d' % vSUM if k in (0, 2, 5, 7) else 0}")
    b.add(W(P.btok[3]))
    b("s_waitcnt lgkmcnt(0)"); b("s_barrier"); stamp(b, 'tb', 3)
    b(f"ds_read2st64_b32 v[{vQ}:{vQ+1}], v{vT2} offset0:0 offset1:1")
    b(f"ds_read2st64_b32 v[{vQ+2}:{vQ+3}], v{vT2} offset0:2 offset1:3")
    b(f"s_add_u32 s{sT0}, s{sCG}, 44"); b(f"s_lshl_b32 s{sT0}, s{sT0}, 17")
    b(f"s_cmp_eq_u32 s{sCG}, 10"); b(f"s_cselect_b32 s{sT0}, {OOB}, s{sT0}")
    b(f"s_and_b32 s{sT1}, s{sWV}, 1"); b(f"s_lshl_b32 s{sT1}, s{sT1}, 9")
    b(f"s_add_u32 s{sSO[0]}, s{sT0}, s{sT1}"); b(f"s_xor_b32 s{sSO[1]}, s{sSO[0]}, 512")
    for j in range(2):
        d = accb[2] + 16 * j
        b(f"v_mfma_f32_32x32x16_bf16 {v(d,16)}, {v(vQ,4)}, {v(vXM+4*j,4)}, {v(d,16)}")
    for j in range(2):
        l, tok = ffn_epilogue(accb[2] + 16 * j, sSO[j], vE + 10 * j)
        store_toks[2].append(tok)
        b.add(interleave(l, P.bdma(4 + j), 12))
        if j == 0: b.add(stamp_ins('f2a', 3), W(store_toks[1]), flag_store(2, vT0), stamp_ins('f2', 3))
    b.add(bsc, b_pf(1))
    for grp in P.bdma(6): b.add(grp)
    stamp(b, 'ep2', 2)
    a2i, a2c = poll_pair(af_issue(2), af_check('ffn'), 'a2')
    a3i, a3c = poll_pair(af_issue(3), af_check('ffn'), 'a3')
    asi, asc = poll_pair(af_issue(3), af_check('all'), 'as')
    PD = 40
    pd = OPT['pd'] if OPT['apf'] else 0
    plan = [('at', a2i, 10 * OPT['c2'] - PD), ('at', a2c + a_pf(11, 11), 10 * OPT['c2']), ('at', [], 10 * OPT['c2'] + pd), ('A', 22),
            ('at', a3i, 10 * OPT['c3'] - PD), ('at', a3c + a_pf(22, 5), 10 * OPT['c3']),
            ('at', asi, 10 * OPT['cs'] - PD), ('at', asc + a_pf(27, 20), 10 * OPT['cs']), ('A', 10), ('at', [], 10 * OPT['cs'] + pd), ('A', 40)]
    phase2(b, P, plan, [0, 1, 2, 3], extra_pins=[(45, stamp_ins('f3a', 3) + [W(store_toks[2])] + flag_store(3, vT0) + stamp_ins('f3', 3))])
    return b

def cmul(b, dr, di, ar, ai, br, bi):
    b(f"v_mul_f32 v{dr}, v{ar}, v{br}"); b(f"v_mul_f32 v{di}, v{ar}, v{bi}")
    b(f"v_fma_f32 v{dr}, -v{ai}, v{bi}, v{dr}"); b(f"v_fma_f32 v{di}, v{ai}, v{br}, v{di}")
def cfma(b, dr, di, ar, ai, br, bi, cr, ci):
    b(f"v_fma_f32 v{dr}, v{ar}, v{br}, v{cr}"); b(f"v_fma_f32 v{di}, v{ar}, v{bi}, v{ci}")
    b(f"v_fma_f32 v{dr}, -v{ai}, v{bi}, v{dr}"); b(f"v_fma_f32 v{di}, v{ai}, v{br}, v{di}")
BA = "op_sel:[0,0,0] op_sel_hi:[0,1,1]"
BB = "op_sel:[1,0,0] op_sel_hi:[1,1,1]"
NEG = " neg_lo:[1,0,0] neg_hi:[1,0,0]"
SW = "op_sel:[1,1,0] op_sel_hi:[1,0,1] neg_lo:[1,0,0]"
def pcfma(b, d, L, x, c):
    b(f"v_pk_fma_f32 {p2(d)}, {p2(L)}, {p2(x)}, {p2(c)} {BA}")
    b(f"v_pk_fma_f32 {p2(d)}, {p2(L)}, {p2(x)}, {p2(d)} {SW}")

def ssm_path():
    b = B()
    b("L_ssm:")
    xi, xt, wi, wt = {}, {0: HEAD['xt0']}, {}, {0: HEAD['wt0']}
    for c in range(1, 10): xi[c], xt[c] = x_dma(c)
    CH = [(sb, c) for sb in range(2) for c in range(10)]
    for cc, (sb, c) in enumerate(CH):
        if cc: wi[cc], wt[cc] = w_dma(cc, vWD, 128, sCOL[sb] if c == 0 else None)
    CR = 192; PR = 216
    AD = 120
    b(f"s_lshl_b32 s{sT0}, s{sG}, 2"); b(f"s_add_u32 s{sT3}, s{sT0}, s{sWV}"); b(f"s_lshl_b32 s{sT0}, s{sT3}, 6")
    b(f"v_and_b32 v{vE}, 31, v{vLANE}"); b(f"v_lshl_add_u32 v{vE+1}, v{vE}, 1, s{sT0}")
    b(f"global_load_ushort v{PR}, v{vE+1}, s[{P_LRE}:{P_LRE+1}]")
    b(f"global_load_ushort v{PR+1}, v{vE+1}, s[{P_LIM}:{P_LIM+1}]")
    b(f"global_load_ushort v{PR+2}, v{vE+1}, s[{P_LDT}:{P_LDT+1}]")
    b.srd(S_P0, P_CRE, 640 * 1280); b.srd(S_P1, P_CIM, 640 * 1280)
    b(f"v_lshrrev_b32 v{AD}, 2, v{vLANE}"); b(f"v_mul_u32_u24 v{AD}, 1280, v{AD}")
    b(f"v_and_b32 v{vE+3}, 3, v{vLANE}"); b(f"v_lshl_add_u32 v{AD}, v{vE+3}, 4, v{AD}")
    b(f"s_and_b32 s{sT1}, s{sRB}, 7"); b(f"s_lshr_b32 s{sT2}, s{sRB}, 3")
    b(f"s_lshl_b32 s{sBFO}, s{sT1}, 1"); b(f"s_add_u32 s{sBFO}, s{sBFO}, s{sT2}")
    b(f"s_mul_i32 s{sT1}, s{sT1}, 5"); b(f"s_mul_i32 s{sT2}, s{sT2}, 3"); b(f"s_add_u32 s{sT2}, s{sT1}, s{sT2}")
    b(f"s_mul_i32 s{sQ1}, s{sT2}, 20480"); b(f"s_add_u32 s{sQ1}, s{sQ1}, s{sT0}")
    cl = B()
    for q in range(3):
        cl(f"buffer_load_dwordx4 {v(CR+8*q,4)}, v{AD}, {srd(S_P0)}, s{sQ1} offen")
        cl(f"buffer_load_dwordx4 {v(CR+8*q+4,4)}, v{AD}, {srd(S_P1)}, s{sQ1} offen")
        if q < 2: cl(f"s_add_u32 s{sQ1}, s{sQ1}, 20480")
    b(f"s_lshl_b32 s{sT1}, s{sT3}, 13"); b(f"s_add_u32 s{sT1}, s{sT1}, {WS_FLG + F_E}")
    b(f"s_add_u32 s{S_E}, s{P_WS}, s{sT1}"); b(f"s_addc_u32 s{S_E+1}, s{P_WS+1}, 0"); b(f"s_and_b32 s{S_E+1}, s{S_E+1}, 0xffff")
    b(f"s_mov_b32 s{S_E+2}, 8192"); b(f"s_mov_b32 s{S_E+3}, 0x20000")
    b(f"s_sub_u32 s{sSO[3]}, 15, s{sRB}"); b(f"s_lshl_b32 s{sSO[3]}, s{sSO[3]}, 9")
    b(f"s_lshl_b32 s{sT3}, s{sT3}, 1"); b(f"s_add_u32 s{sT3}, s{sT3}, 54")
    b(f"s_mul_i32 s{sSO[2]}, s{sT3}, {B2_STEP}"); b(f"s_lshl_b32 s{sT1}, s{sT2}, 10"); b(f"s_add_u32 s{sSO[2]}, s{sSO[2]}, s{sT1}")
    b(f"s_lshl_b32 s{sT3}, s{sT3}, 4"); b(f"s_add_u32 s{sBFO}, s{sBFO}, s{sT3}"); b(f"s_lshl_b32 s{sBFO}, s{sBFO}, 7"); b(f"s_add_u32 s{sBFO}, s{sBFO}, {F_BF}")
    b(f"s_lshl_b32 s{sSO[0]}, s{sG}, 3"); b(f"s_add_u32 s{sSO[0]}, s{sSO[0]}, 54"); b(f"s_lshl_b32 s{sSO[0]}, s{sSO[0]}, 17")
    b(f"s_add_u32 s{sPW}, s{sPW}, {64*1280}")
    b(f"s_mov_b32 s{sT0}, s{sWV}")
    frag_addr_setup(b)
    for k in range(4):
        b(f"v_mov_b32 v{vWR+k}, v{vXR+k}"); b(f"v_add_u32 v{vXR+k}, s{sM0X}, v{vXR+k}")
    tok_setup(b)
    stamp(b, 'adr', 2)
    b.add(xi[1], wi[1])
    q = B()
    lr, li, dt, zr, zi, mg = PR, PR + 1, PR + 2, PR + 3, PR + 4, PR + 5
    TA = PR + 6; TB = PR + 8; CF = PR + 10; L1 = PR + 12; LQ = PR + 16
    LOG2E = math.log2(math.e)
    for r in (lr, li, dt): q(f"v_lshlrev_b32 v{r}, 16, v{r}")
    q(f"v_mul_f32 v{dt}, {f32(LOG2E)}, v{dt}"); q(f"v_exp_f32 v{dt}, v{dt}"); bf16_round(q, dt, dt)
    q(f"v_mul_f32 v{zr}, v{dt}, v{lr}"); q(f"v_mul_f32 v{zi}, v{dt}, v{li}")
    q(f"v_mul_f32 v{zr}, {f32(LOG2E)}, v{zr}"); q(f"v_exp_f32 v{mg}, v{zr}")
    q(f"v_mul_f32 v{zi}, 0.15915494, v{zi}")
    q(f"v_rndne_f32 v{zr}, v{zi}"); q(f"v_sub_f32 v{zi}, v{zi}, v{zr}")
    q(f"v_cos_f32 v{L1}, v{zi}"); q(f"v_sin_f32 v{L1+1}, v{zi}")
    q(f"v_mul_f32 v{L1}, v{L1}, v{mg}"); q(f"v_mul_f32 v{L1+1}, v{L1+1}, v{mg}")
    q(f"v_mul_f32 v{zr}, v{lr}, v{lr}"); q(f"v_fma_f32 v{zr}, v{li}, v{li}, v{zr}"); q(f"v_rcp_f32 v{zr}, v{zr}")
    q(f"v_add_f32 v{zi}, -1.0, v{L1}")
    q(f"v_add_f32 v{zr}, v{zr}, v{zr}")
    q(f"v_mul_f32 v{CF}, v{zi}, v{lr}"); q(f"v_fma_f32 v{CF}, v{L1+1}, v{li}, v{CF}")
    q(f"v_mul_f32 v{CF+1}, v{L1+1}, v{lr}"); q(f"v_fma_f32 v{CF+1}, -v{zi}, v{li}, v{CF+1}")
    q(f"v_mul_f32 v{CF}, v{CF}, v{zr}"); q(f"v_mul_f32 v{CF+1}, v{CF+1}, v{zr}")
    def csq(d, s): cmul(q, d, d + 1, s, s + 1, s, s + 1)
    csq(TA, L1); csq(TB, TA); csq(L1 + 2, TB); csq(LQ + 2, L1 + 2)
    q(f"v_mov_b32 v{LQ}, 1.0"); q(f"v_mov_b32 v{LQ+1}, 0")
    def lq(k, x, y): cmul(q, LQ + 2*k, LQ + 2*k + 1, LQ + 2*x, LQ + 2*x + 1, LQ + 2*y, LQ + 2*y + 1)
    lq(2, 1, 1); lq(3, 2, 1); lq(4, 2, 2); lq(5, 4, 1); lq(6, 4, 2); lq(7, 4, 3); lq(8, 4, 4)
    q(f"v_and_b32 v{AD+2}, 31, v{vLANE}"); q(f"s_lshl_b32 s{sT0}, s{sWV}, 5"); q(f"v_add_u32 v{AD}, s{sT0}, v{AD+2}")
    q(f"v_lshlrev_b32 v{AD+1}, 4, v{AD}"); q(f"v_add_u32 v{AD+1}, {PL}, v{AD+1}")
    q(f"v_lshlrev_b32 v{AD+3}, 6, v{AD}"); q(f"v_add_u32 v{AD+3}, {PA}, v{AD+3}")
    q(f"v_lshlrev_b32 v{AD}, 3, v{AD}"); q(f"v_add_u32 v{AD}, {PH}, v{AD}")
    q(f"v_lshl_add_u32 v{AD+2}, v{AD+2}, 3, s{sM0X}")
    q(f"ds_write_b64 v{AD+2}, {p2(CF)} offset:{XS4}")
    q(f"ds_write_b128 v{AD+1}, {v(L1,4)}"); q(f"ds_write_b64 v{AD}, {p2(LQ+16)}")
    for k in range(4): q(f"ds_write_b128 v{AD+3}, {v(LQ+4*k,4)} offset:{16*k}")
    q(f"v_and_b32 v{AD}, 3, v{vLANE}"); q(f"v_lshlrev_b32 v{AD+1}, 6, v{AD}")
    q(f"v_add_u32 v{AD+1}, s{sM0X}, v{AD+1}")
    CO = LQ
    for k in range(4): q(f"ds_read_b128 {v(CO+4*k,4)}, v{AD+1} offset:{XS4 + 16*k}")
    q(f"v_lshlrev_b32 v{AD}, 4, v{AD}")
    q(f"v_lshrrev_b32 v{AD+1}, 2, v{vLANE}"); q(f"v_add_u32 v{AD}, v{AD}, v{AD+1}"); q(f"v_lshlrev_b32 v{AD}, 4, v{AD}")
    q(f"v_add_u32 v{AD}, s{sM0X}, v{AD}"); q(f"v_add_u32 v{AD+1}, s{sM0X}, v{vL16}")
    qp = q; q = B()
    U = PR; OR_ = 104; RB_ = 112
    pre_st = []
    pend = []
    for k3 in range(3):
        for d in range(4):
            q(f"v_lshlrev_b32 v{U}, 16, v{CR+8*k3+d}"); q(f"v_lshlrev_b32 v{U+1}, 16, v{CR+8*k3+4+d}")
            q(f"v_and_b32 v{U+2}, 0xffff0000, v{CR+8*k3+d}"); q(f"v_and_b32 v{U+3}, 0xffff0000, v{CR+8*k3+4+d}")
            for e in range(2):
                ca, cb_ = CO + 4 * d + 2 * e, CO + 4 * d + 2 * e + 1
                cr, ci = U + 2 * e, U + 2 * e + 1
                q(f"v_mul_f32 v{U+4+e}, v{cr}, v{ca}"); q(f"v_fma_f32 v{U+4+e}, -v{ci}, v{cb_}, v{U+4+e}")
                q(f"v_mul_f32 v{U+6+e}, v{cr}, v{cb_}"); q(f"v_fma_f32 v{U+6+e}, v{ci}, v{ca}, v{U+6+e}")
            q(f"v_cvt_pk_bf16_f32 v{OR_+d}, v{U+4}, v{U+5}")
            q(f"v_cvt_pk_bf16_f32 v{OR_+4+d}, -v{U+6}, -v{U+7}")
            if d == 1: q.add(pend); pend = []
        so = XS4 + 2048
        q(f"ds_write_b128 v{AD}, {v(OR_,4)} offset:{so}"); q(f"ds_write_b128 v{AD}, {v(OR_+4,4)} offset:{so+1024}")
        q(f"ds_read_b128 {v(RB_,4)}, v{AD+1} offset:{so}"); q(f"ds_read_b128 {v(RB_+4,4)}, v{AD+1} offset:{so+1024}")
        s_ = B()
        if k3 == 2:
            s_(f"s_cmp_ge_u32 s{sRB}, 8"); s_(f"s_cselect_b32 s{sSO[2]}, {OOB}, s{sSO[2]}")
        s_(f"s_add_u32 s{sT1}, s{sSO[2]}, {B2_STEP}")
        pre_st.append(s_(f"buffer_store_dwordx4 {v(RB_,4)}, v{vL16}, {srd(S_B2)}, s{sSO[2]} offen sc1"))
        pre_st.append(s_(f"buffer_store_dwordx4 {v(RB_+4,4)}, v{vL16}, {srd(S_B2)}, s{sT1} offen sc1"))
        if k3 < 2: s_(f"s_add_u32 s{sSO[2]}, s{sSO[2]}, 1024")
        pend = [s_.l]
        pend = s_.l
    qc = q; qlast = pend

    st = Stream(); main = []; first_gap = {}; sb_last = {}; corr_at = {}
    accb = [vACC, vACC + 64]
    QG = [26, 30, 96, 100]
    vCS2 = [44, 104]
    n = 0
    for cc, (sb, c) in enumerate(CH):
        for ks in range(4):
            kk = c * 4 + ks
            if sb == 1 and c == 1 and ks == 2:
                corr_at[0] = len(st.m)
                for j in range(4):
                    d = accb[0] + 16 * j
                    st.add(I(f"v_mfma_f32_32x32x16_bf16 {v(d,16)}, {v(vXM,4)}, {v(QG[j],4)}, {v(d,16)}"))
            for j in range(4):
                d = accb[sb] + 16 * j; fr = vFR + 4 * (n % NF)
                g = st.add(I(f"v_mfma_f32_32x32x16_bf16 {v(d,16)}, {a(4*kk,4)}, {v(fr,4)}, {'0' if kk == 0 else v(d,16)}"))
                main.append((g, sb, cc, ks, j, kk)); n += 1
                if ks == 0 and j == 0: first_gap[cc] = len(main) - 1
                if ks == 0:
                    cs = vCS2[sb] + 4 * j
                    st.add(I(f"v_mfma_f32_16x16x32_bf16 {v(cs,4)}, {v(vSEL,4)}, {v(fr,4)}, {'0' if kk == 0 else v(cs,4)}"))
                if sb == 0 and j == 1:
                    st.add(I(f"v_mfma_f32_16x16x32_bf16 {v(vSUM,4)}, {v(vSEL,4)}, {a(4*kk,4)}, {'0' if kk == 0 else v(vSUM,4)}"))
                if sb == 0 and j >= 2:
                    xr = a(4 * kk + 2 * (j - 2), 2)
                    st.add(I(f"v_mfma_f32_4x4x4_16b_bf16 {v(vSQ,4)}, {xr}, {xr}, {'0' if (kk == 0 and j == 2) else v(vSQ,4)}"))
            sb_last[sb] = len(st.m) - 1
    def wread(idx):
        g, sb, cc, ks, j, kk = main[idx]
        fr = vFR + 4 * (idx % NF)
        return [I(f"ds_read_b128 {v(fr,4)}, v{vWR+ks} offset:{(cc % NSLOT) * 16384 + j * 4096}")]
    xrd = {}
    def xread(kk):
        xrd[kk] = I(f"ds_read_b128 {a(4*kk,4)}, v{vXR + kk % 4} offset:{((kk // 4) % NX) * 4096}")
        return xrd[kk]
    vPW2 = 22
    b(f"v_mov_b32 v{vPW2}, v{vPW}")
    b.add(W(xt[0], wt[0])); b("s_barrier"); stamp(b, 'c0', 2)
    b.add(xread(0))
    for idx in range(LA): b.add(wread(idx))
    def G(cc, k): return main[min(max(first_gap[cc] - LA, 0) + k, len(main) - 1)][0]
    def spread(cc, k0, groups):
        for k, grp in enumerate(groups): st.pin(G(cc, k0 + k), *(grp if isinstance(grp, list) else [grp]))
    def cs_write(bb, sb):
        toks = []
        for j in range(4):
            cs_pack(bb, vT3, vCS2[sb] + 4 * j, vT1)
            toks.append(bb(f"ds_write_b32 v{vT2}, v{vT3} offset:{1024*j}"))
        return toks
    q0 = B()
    q0(f"s_lshl_b32 s{sT2}, s{sWV}, 2"); q0(f"s_add_u32 s{sT2}, s{sT2}, {CSX}")
    q0(f"v_add_u32 v{vT2}, s{sT2}, v{vL16}")
    q0(f"v_add_u32 v{vK1}, {CSX}, v{vL16}")
    csw0 = cs_write(q0, 0)
    P = P2(); P.give('a', 160, 252)
    bfi, bfc = poll_pair(bf_issue('ffn'), bf_check('ffn'), 'bf')
    def pairs(l): return [l[k:k+2] for k in range(0, len(l), 2)]
    spread(0, 1, pairs(xi[2] + wi[2] + xi[3] + wi[3]))
    if OPT['pf'] and OPT['order'] == 3: st.pin(G(1, 0), *[I(i.text) for i in HEAD['pfb'].l])
    for idx in range(len(main)):
        g, sb, cc, ks, j, kk = main[idx]
        t = idx + LA
        if t < len(main):
            g2, sb2, cc2, ks2, j2, kk2 = main[t]
            if first_gap[cc2] == t:
                toks = list(wt[cc2])
                if sb2 == 0: toks += xt[cc2]
                if cc2 == 11: toks += csw0
                st.pin(g, W(toks), I("s_barrier"), *stamp_ins(f"c{cc2}", 2 if cc2 == 10 else 1))
                nxt = []
                if cc2 + 3 < len(CH): nxt += wi[cc2 + 3]
                if sb2 == 0 and cc2 + 3 < 10:
                    nxt += [[W([xrd[4 * (cc2 - 1) + q] for q in range(4)]), xi[cc2 + 3][0]]] + xi[cc2 + 3][1:]
                spread(cc2, 2, nxt)
                if cc2 == 11:
                    for jj in range(4):
                        st.pin(main[idx + 1 + jj][0], I(f"ds_read_b128 {v(QG[jj],4)}, v{vK1} offset:{1024*jj}"))
                if cc2 == 3:
                    if OPT['pf']: st.pin(G(3, 14), pf_ins(vPW2, S_W, f"s{sPW}"))
                    st.pin(G(3, 15), *cl.l)
                if cc2 == 9: st.pin(G(9, 14), *qlast)
                if cc2 == 12: st.pin(G(12, 10), W(pre_st), *bf_store(vT0), *flag_store(1, vT0))
                if cc2 == 15: st.pin(G(15, 11), *bfi)
                if cc2 == 16: st.pin(G(16, 12), *bfc, *b_pf(0))
                if cc2 in (18, 19): spread(cc2, 2, P.bdma(2 * (cc2 - 18)) + P.bdma(2 * (cc2 - 18) + 1))
            if sb2 == 0 and j2 == 0: st.pin(g, xread(kk2))
            st.pin(g, *wread(t))
    st.queue(qp.l, G(4, 0), G(6, 4), name='par')
    st.queue(qc.l, G(6, 5), G(9, 10), name='cpr')
    bar_gap = main[first_gap[11] - LA][0]
    st.queue(q0.l, sb_last[0] - 12, bar_gap - 1, name="cs0")
    def trow(bb, t):
        bb(f"v_bfe_u32 v{t}, v{vLANE}, 2, 1"); bb(f"v_lshlrev_b32 v{t}, 4, v{t}")
        bb(f"v_and_b32 v{t+1}, 1, v{vLANE}"); bb(f"v_lshl_add_u32 v{t}, v{t+1}, 3, v{t}")
        bb(f"v_bfe_u32 v{t+1}, v{vLANE}, 3, 2"); bb(f"v_lshl_add_u32 v{t}, v{t+1}, 1, v{t}")
        bb(f"v_bfe_u32 v{t+1}, v{vLANE}, 1, 1"); bb(f"v_add_u32 v{t}, v{t}, v{t+1}")
    q = B()
    SE_ = 10
    E = 8
    q.add(stats_final(trow, E))
    for k in range(4): q(f"v_mov_b32 v{vXM+k}, v{E+3}")
    st.queue(q.l, sb_last[0] + 2, G(11, 0), name="st0")
    b.add(st.schedule(lambda g, mf: mf.passes * 4 - 8 - (2 if mf.passes == 8 else 0)))
    print("SSM stream: gaps", len(st.m), "overflow cycles", st.over, {q['name']: q['done_gap'] for q in st.queues}, sb_last, file=sys.stderr)
    stamp(b, 'm1', 2)
    P.give('a', 0, 160)
    bsi, bsc = poll_pair(bf_issue('all'), bf_check('all'), 'bs')
    b.add(bsi)
    cs_write(b, 1)
    RS = 44
    b(f"v_lshrrev_b32 v{vT0}, 5, v{vLANE}"); b(f"s_lshl_b32 s{sT0}, s{sWV}, 8"); b(f"s_add_u32 s{sT0}, s{sT0}, {STAT}")
    b(f"v_lshl_add_u32 v{vT0}, v{vT0}, 7, s{sT0}")
    for k in range(8): b(f"ds_read2_b32 {p2(RS+2*k)}, v{vT0} offset0:{2*k+1} offset1:{2*k+17}")
    for k in range(4): b(f"v_mov_b32 v{60+k}, 0")
    b(f"s_lshl_b32 s{sT0}, s{sWV}, 10"); b(f"s_add_u32 s{sT0}, s{sT0}, {SCX - 4096}")
    b(f"v_add_u32 v{vT3}, s{sT0}, v{vL16}")
    b(f"v_and_b32 v{vT0}, 19, v{vLANE}")
    b(f"v_bfe_u32 v{vT1}, v{vLANE}, 2, 1"); b(f"v_lshl_add_u32 v{vT0}, v{vT1}, 3, v{vT0}")
    b(f"v_bfe_u32 v{vT1}, v{vLANE}, 3, 1"); b(f"v_lshl_add_u32 v{vT0}, v{vT1}, 2, v{vT0}")
    b(f"v_lshlrev_b32 v{vT1}, 4, v{vT0}"); b(f"v_add_u32 v{vT1}, {PL}, v{vT1}")
    b(f"v_lshlrev_b32 v{vT2}, 6, v{vT0}"); b(f"v_add_u32 v{vT2}, {PA}, v{vT2}")
    LB = 64; L8 = 72; LM = 6; AT = 22; EO = 22; LO32 = 30; LO128 = 32; L256 = 86
    b("s_waitcnt lgkmcnt(0)"); b("s_barrier")
    for jj in range(4): b(f"ds_read_b128 {v(QG[jj],4)}, v{vK1} offset:{1024*jj}")
    b(f"ds_read2_b64 {v(LB,4)}, v{vT1} offset0:0 offset1:64"); b(f"ds_read2_b64 {v(LB+4,4)}, v{vT1} offset0:128 offset1:192")
    b(f"ds_write_b128 v{vT3}, v[60:63]")
    b(f"ds_read2_b64 {v(L8,4)}, v{vT1} offset0:1 offset1:65"); b(f"ds_read2_b64 {v(L8+4,4)}, v{vT1} offset0:129 offset1:193")
    for cb in range(4):
        b(f"v_add_u32 v{vT3}, {2048*cb}, v{vT2}")
        b(f"ds_read2_b64 {v(LM+4*cb,4)}, v{vT3} offset0:1 offset1:2")
    RE = lambda cb: accb[cb // 2] + 16 * (cb % 2)
    IM = lambda cb: accb[cb // 2] + 32 + 16 * (cb % 2)
    for j in range(4):
        d = accb[1] + 16 * j
        b(f"v_mfma_f32_32x32x16_bf16 {v(d,16)}, {v(vXM,4)}, {v(QG[j],4)}, {v(d,16)}")
    b(f"s_lshl_b32 s{sT0}, s{sWV}, 11"); b(f"v_add_u32 v{vT3}, s{sT0}, v{vT2}")
    b(f"s_lshl_b32 s{sT0}, s{sWV}, 8"); b(f"s_add_u32 s{sT0}, s{sT0}, {PH}"); b(f"v_lshl_add_u32 v{vT0}, v{vT0}, 3, s{sT0}")
    b(f"s_lshl_b32 s{sT0}, s{sWV}, 4"); b(f"v_lshrrev_b32 v{vT1}, 5, v{vLANE}")
    b(f"v_lshl_add_u32 v{vT2}, v{vT1}, 3, v{vT2}"); b(f"v_add_u32 v{vT2}, s{sT0}, v{vT2}")
    t1 = B()
    for blk in range(8):
        for j in range(8):
            r = vACC + 16 * blk + 2 * j
            t1(f"v_pk_mul_f32 {p2(r)}, {p2(r)}, {p2(RS+2*j)}")
    t1(f"ds_read_b64 {p2(LO32)}, v{vT3} offset:16"); t1(f"ds_read_b64 {p2(LO128)}, v{vT0}")
    H = 92
    for j in range(1, 8):
        for ph in range(2):
            for cb in range(4):
                L = LB + 2 * cb
                if j == 1: pr, pi = RE(cb), IM(cb)
                else: pr, pi = H + 8 * cb + 4 * (j % 2), H + 8 * cb + 4 * (j % 2) + 2
                nr = H + 8 * cb + 4 * ((j + 1) % 2); ni = nr + 2
                if ph == 0:
                    t1(f"v_pk_fma_f32 {p2(nr)}, {p2(L)}, {p2(pr)}, {p2(RE(cb)+2*j)} {BA}")
                    t1(f"v_pk_fma_f32 {p2(ni)}, {p2(L)}, {p2(pi)}, {p2(IM(cb)+2*j)} {BA}")
                else:
                    t1(f"v_pk_fma_f32 {p2(nr)}, {p2(L)}, {p2(pi)}, {p2(nr)} {BB}{NEG}")
                    t1(f"v_pk_fma_f32 {p2(ni)}, {p2(L)}, {p2(pr)}, {p2(ni)} {BB}")
    b.add(interleave(t1.l, P.bdma(4) + P.bdma(5), 8))
    b.add(bsc, b_pf(1))
    E32 = 44
    for cb in range(4):
        h = H + 8 * cb; L = L8 + 2 * cb
        cfma(b, h + 4, h + 5, L, L + 1, h, h + 2, h + 1, h + 3)
    for cb in range(4):
        h = H + 8 * cb
        b(f"v_mov_b32 v{h+6}, v{h+4}"); b(f"v_mov_b32 v{h+7}, v{h+5}")
    for cb in range(4):
        h = H + 8 * cb
        b(f"v_permlane32_swap_b32 v{h+4}, v{h+6}"); b(f"v_permlane32_swap_b32 v{h+5}, v{h+7}")
    for cb in range(4):
        h = H + 8 * cb; M = LM + 4 * cb
        b(f"v_pk_fma_f32 {p2(E32+2*cb)}, {p2(M)}, {p2(h+4)}, {p2(h+6)} {BA}")
    for cb in range(4):
        h = H + 8 * cb; M = LM + 4 * cb
        b(f"v_pk_fma_f32 {p2(E32+2*cb)}, {p2(M)}, {p2(h+4)}, {p2(E32+2*cb)} {SW}")
    b(f"v_and_b32 v{vT1}, 31, v{vLANE}"); b(f"v_lshlrev_b32 v{vT1}, 5, v{vT1}")
    b(f"s_lshl_b32 s{sT0}, s{sWV}, 10"); b(f"s_add_u32 s{sT0}, s{sT0}, {SCX - 3072}"); b(f"v_add_u32 v{vT0}, s{sT0}, v{vT1}")
    b(f"ds_write_b128 v{vT0}, {v(E32,4)} offset:3072"); b(f"ds_write_b128 v{vT0}, {v(E32+4,4)} offset:3088")
    b(f"s_lshl_b32 s{sT0}, s{sWV}, 3"); b(f"v_add_u32 v{vT3}, s{sT0}, v{vT1}")
    b(f"v_cmp_gt_u32 vcc, 32, v{vLANE}"); b(f"v_mov_b32 v{vK2+1}, {OOB}")
    b(f"v_cndmask_b32 v{vK2+1}, v{vK2+1}, v{vL16}, vcc")
    b("s_waitcnt lgkmcnt(0)"); b("s_barrier")
    b(f"ds_read2st64_b64 {v(EO,4)}, v{vT3} offset0:{SCX//512} offset1:{SCX//512+2}")
    b(f"ds_read2st64_b64 {v(EO+4,4)}, v{vT3} offset0:{SCX//512+4} offset1:{SCX//512+6}")
    EWr = [lambda cb: 36 + 2 * cb, lambda cb: 52 + 2 * cb, lambda cb: (60 + 2 * cb if cb < 2 else 76 + 2 * cb)]
    for i in range(3):
        b(f"ds_read_b128 {v(EWr[i](0),4)}, v{vT0} offset:{1024*i}"); b(f"ds_read_b128 {v(EWr[i](2),4)}, v{vT0} offset:{1024*i+16}")
    for i in range(1, 4): pcfma(b, EO + 2 * i, LO32, EO + 2 * i - 2, EO + 2 * i)
    b(f"v_mov_b32 v{EO+8}, s{sTOK}")
    b(f"buffer_store_dwordx3 {v(EO+6,3)}, v{vK2+1}, {srd(S_E)}, s{sSO[3]} offen sc1")
    stamp(b, 'pub', 2)
    for i in range(1, 3):
        for ph in range(2):
            for cb in range(4):
                M = LM + 4 * cb + 2
                b(f"v_pk_fma_f32 {p2(EWr[i](cb))}, {p2(M)}, {p2(EWr[i-1](cb))}, {p2(EWr[i](cb))} {SW if ph else BA}")
    PW = EWr[2]
    for cb in range(4): b(f"ds_read_b64 {p2(AT+2*cb)}, v{vT2} offset:{2048*cb}")
    for ph in range(2):
        for cb in range(4):
            h = H + 8 * cb; M = LM + 4 * cb
            b(f"v_pk_fma_f32 {p2(h+4)}, {p2(M)}, {p2(PW(cb))}, {p2(h+4)} {SW if ph else BA}")
    for cb in range(4):
        h = H + 8 * cb
        b(f"v_cndmask_b32 v{h+6}, v{h+4}, v{PW(cb)}, vcc")
        b(f"v_cndmask_b32 v{h+4}, v{h+5}, v{PW(cb)+1}, vcc")
    a1i, a1c = poll_pair(af_issue(1), af_check('ffn'), 'a1')
    b.add(a1i)
    ER = [36 + 4 * i for i in range(7)] + [6]
    def lb_loads(bb):
        for i in range(8):
            if i % 4 == 0: bb(f"s_add_u32 s{sT0}, s{sSO[3]}, {512 + 1024 * i}")
            bb(f"buffer_load_dwordx3 {v(ER[i],3)}, v{vL16}, {srd(S_E)}, s{sT0} offen offset:{1024*(i%4)} sc1")
    vNT = 10
    def lb_check(bb):
        bb(f"v_add3_u32 v{vT0}, v{ER[0]+2}, v{ER[1]+2}, v{ER[2]+2}")
        bb(f"v_add3_u32 v{vT0}, v{ER[3]+2}, v{ER[4]+2}, v{vT0}")
        bb(f"v_add3_u32 v{vT0}, v{ER[5]+2}, v{ER[6]+2}, v{vT0}")
        bb(f"v_add_u32 v{vT0}, v{ER[7]+2}, v{vT0}")
        bb(f"v_cmp_ne_u32 vcc, v{vNT}, v{vT0}")
        bb("s_cmp_lg_u64 vcc, 0")
    for cb in range(4):
        h = H + 8 * cb; L = L8 + 2 * cb
        cfma(b, h + 7, h + 5, L, L + 1, h + 6, h + 4, h, h + 2)
    for cb in range(4):
        h = H + 8 * cb; L = L8 + 2 * cb
        cmul(b, h + 1, h + 3, L, L + 1, AT + 2*cb, AT + 2*cb + 1)
        b(f"v_mov_b32 v{h}, v{AT+2*cb}"); b(f"v_mov_b32 v{h+2}, v{AT+2*cb+1}")
    lb_loads(b)
    cmul(b, L256, L256 + 1, LO128, LO128 + 1, LO128, LO128 + 1)
    b(f"v_lshrrev_b32 v{vNT}, 5, v{vLANE}"); b(f"s_add_u32 s{sT1}, s{sRB}, 1"); b(f"v_sub_u32 v{vNT}, s{sT1}, v{vNT}")
    b(f"v_lshrrev_b32 v{vNT}, 1, v{vNT}"); b(f"v_mul_lo_u32 v{vNT}, v{vNT}, s{sTOK}")
    SE = 72
    b(f"v_bfe_u32 v{vT0}, v{vLANE}, 3, 1"); b(f"v_lshlrev_b32 v{vT0}, 4, v{vT0}")
    b(f"v_mov_b32 v{vT2}, 0x3f80"); b(f"v_lshlrev_b32 v{vT2}, v{vT0}, v{vT2}")
    b(f"v_lshrrev_b32 v{vT0}, 1, v{vLANE}"); b(f"v_xor_b32 v{vT0}, v{vT0}, v{vLANE}"); b(f"v_and_b32 v{vT0}, 16, v{vT0}")
    b(f"v_and_or_b32 v{vT0}, v{vLANE}, 7, v{vT0}")
    for k in range(8):
        b(f"v_cmp_eq_u32 vcc, {k}, v{vT0}"); b(f"v_cndmask_b32 v{SE+k}, 0, v{vT2}, vcc")
    b(f"v_add_u32 v{vT3}, {HXL}, v{vT3}"); b(f"v_add_u32 v{vT1}, {HXL}, v{vT1}")
    slow_loop(b, lb_loads, lb_check, 1)
    stamp(b, 'lb', 2)
    for i in range(6, -1, -1): pcfma(b, ER[i], L256, ER[i + 1], ER[i])
    G0 = ER[0]
    b(f"v_mov_b32 v{G0+2}, v{G0}"); b(f"v_mov_b32 v{G0+3}, v{G0+1}")
    b(f"v_permlane32_swap_b32 v{G0}, v{G0+2}"); b(f"v_permlane32_swap_b32 v{G0+1}, v{G0+3}")
    pcfma(b, G0, LO128, G0 + 2, G0)
    b(f"ds_write_b64 v{vT3}, {p2(G0)}")
    b.add(a1c, a_pf(0, 11))
    b.add(W(P.btok[5]))
    b("s_waitcnt lgkmcnt(0)"); b("s_barrier")
    HX = 6
    b(f"ds_read_b128 {v(HX,4)}, v{vT1}"); b(f"ds_read_b128 {v(HX+4,4)}, v{vT1} offset:16")
    t2 = B()
    for cb in range(4):
        h = H + 8 * cb; X = HX + 2 * cb
        t2(f"v_pk_fma_f32 {p2(h+6)}, {p2(X)}, {p2(h)}, {p2(h+6)} {BA}")
        t2(f"v_pk_fma_f32 {p2(h+4)}, {p2(X)}, {p2(h+2)}, {p2(h+4)} {BA}")
    for cb in range(4):
        h = H + 8 * cb; X = HX + 2 * cb
        t2(f"v_pk_fma_f32 {p2(h+6)}, {p2(X)}, {p2(h+2)}, {p2(h+6)} {BB}{NEG}")
        t2(f"v_pk_fma_f32 {p2(h+4)}, {p2(X)}, {p2(h)}, {p2(h+4)} {BB}")
    for j in range(8):
        for ph in range(2):
            for cb in range(4):
                L = LB + 2 * cb
                if j == 0: pr, pi = H + 8 * cb + 6, H + 8 * cb + 4
                else: pr, pi = RE(cb) + 2 * j - 2, IM(cb) + 2 * j - 2
                nr, ni = RE(cb) + 2 * j, IM(cb) + 2 * j
                if ph == 0:
                    t2(f"v_pk_fma_f32 {p2(nr)}, {p2(L)}, {p2(pr)}, {p2(nr)} {BA}")
                    t2(f"v_pk_fma_f32 {p2(ni)}, {p2(L)}, {p2(pi)}, {p2(ni)} {BA}")
                else:
                    t2(f"v_pk_fma_f32 {p2(nr)}, {p2(L)}, {p2(pi)}, {p2(nr)} {BB}{NEG}")
                    t2(f"v_pk_fma_f32 {p2(ni)}, {p2(L)}, {p2(pr)}, {p2(ni)} {BB}")
    b.add(interleave(t2.l, [P.ld() for _ in range(12)], 10))
    stamp(b, 'ps2', 2)
    DB = [6, 36, 92, 108]
    blks = [(cb, ri) for cb in range(4) for ri in range(2)]
    def cin(n):
        cb, ri = blks[n]; r = IM(cb) if ri else RE(cb)
        return [I(f"v_cvt_pk_bf16_f32 v{r+j}, v{r+2*j}, v{r+2*j+1}") for j in range(8)]
    stoks = []
    def cout(n):
        d = DB[n % 4]; l = []
        for u in range(2):
            l += [I(f"v_cvt_pk_bf16_f32 v{d+4*u+j}, v{d+8*u+2*j}, v{d+8*u+2*j+1}") for j in range(4)]
            t = I(f"buffer_store_dwordx4 {v(d+4*u,4)}, v{vST}, {srd(S_A2)}, s{sSO[0]} offen offset:{512*u} sc1")
            l.append(t); stoks.append(t)
        l.append(I(f"s_add_u32 s{sSO[0]}, s{sSO[0]}, {A2_STEP}"))
        return l
    b.add(cin(0))
    for n in range(8):
        cb, ri = blks[n]; r = IM(cb) if ri else RE(cb); d = DB[n % 4]
        b(f"v_mfma_f32_32x32x16_bf16 {v(d,16)}, {v(r,4)}, {v(SE,4)}, 0")
        if n + 1 < 8: b.add(cin(n + 1))
        b(f"v_mfma_f32_32x32x16_bf16 {v(d,16)}, {v(r+4,4)}, {v(SE+4,4)}, {v(d,16)}")
        if n >= 1: b.add(cout(n - 1))
    b.add(cout(7))
    stamp(b, 'trs', 2)
    a2i, a2c = poll_pair(af_issue(2), af_check('ffn'), 'a2')
    a3i, a3c = poll_pair(af_issue(3), af_check('ffn'), 'a3')
    asi, asc = poll_pair(af_issue(3), af_check('all'), 'as')
    b.add(a2i)
    for _ in range(10): b.add(P.ld())
    for grp in P.bdma(6): b.add(grp)
    PD = 40
    pd = OPT['pd'] if OPT['apf'] else 0
    plan = [('at', [W(stoks)] + flag_store(3, vT0) + stamp_ins('flg', 2) + a2c + a_pf(11, 11), 30), ('A', 22),
            ('at', a3i, 10 * OPT['s_c3'] - PD), ('at', a3c + a_pf(22, 5), 10 * OPT['s_c3']),
            ('at', asi, 10 * OPT['s_cs'] - PD), ('at', asc + a_pf(27, 20), 10 * OPT['s_cs']), ('A', 10), ('at', [], 10 * OPT['s_cs'] + pd), ('A', 40)]
    phase2(b, P, plan, [0, 1, 2, 3, 4, 5])
    return b

def main():
    pro = prologue(); ffn = ffn_path(); ssm = ssm_path()
    pl, n0 = resolve_stamps(pro.l, 0)
    fl, n1 = resolve_stamps(ffn.l, len(n0))
    sl, n2 = resolve_stamps(ssm.l, len(n0))
    out = []; stats = {}
    st = finalize(pl, State(), out, stats)
    st2 = st.copy()
    finalize(fl, st, out, stats)
    finalize(sl, st2, out, stats)
    for sp in slow_paths: finalize(sp.l, State(), out, stats)
    print("stats", stats, "instrs", len(out), file=sys.stderr)
    ref = open('parallel_sum__ssm_conv_s5__geglu_ffn__prompt.s.ref').read().split('\n')
    hdr = [l for l in ref if l.startswith(';') and '@launch' not in l]
    L = hdr + [f"; @launch grid=(256,1,1) block=(256,1,1) lds={LDS_BYTES}",
               '.amdgcn_target "amdgcn-amd-amdhsa--gfx950"', '.text', f'.globl {KNAME}', '.p2align 8',
               f'.type {KNAME},@function', f'{KNAME}:']
    for i in out:
        t = i.text
        if t.startswith('<'): continue
        t = t.replace('NPAGES_M1', '((L_end-L_pc0)>>12)-1')
        L.append(t if i.kind == 'label' else '  ' + t)
    L += ['L_end:', '  s_endpgm', '.section .rodata,"a"', '.p2align 6', f'.amdhsa_kernel {KNAME}',
          '  .amdhsa_next_free_vgpr 512', '  .amdhsa_next_free_sgpr 102', '  .amdhsa_accum_offset 256',
          '  .amdhsa_group_segment_fixed_size 0', '  .amdhsa_kernarg_size 128', '  .amdhsa_user_sgpr_count 2',
          '  .amdhsa_user_sgpr_kernarg_segment_ptr 1', '  .amdhsa_system_sgpr_workgroup_id_x 1', '.end_amdhsa_kernel', '']
    open(sys.argv[1], 'w').write('\n'.join(L))
    json.dump({'ffn': n0 + n1, 'ssm': n0 + n2, 'map': OPT['map']}, open(sys.argv[1] + '.json', 'w'))

main()
```

```python
import sys, math, struct, os, json
from collections import deque
from asmfw import *

KNAME = "parallel_sum__ssm_conv_s5__geglu_ffn__prompt_kernel"
OPT = dict(stamps=0, warm=1, nt=0, pf=1, order=2, dbgts=0, c2=3, c3=12, cs=18, s_c3=6, s_cs=12, sk=12, xd=50, exp=0, pfnt=0, map=1, apf=1, bpf=1, pd=60, hx=0, wsoff=0, ost=0)
for a_ in sys.argv[2:]:
    k_, v_ = a_.split('='); assert k_ in OPT, k_; OPT[k_] = int(v_)

def f32(x): return "0x%08x" % struct.unpack('<I', struct.pack('<f', x))[0]

RING = 0; NSLOT = 4; XST = 65536; NX = 4; XSZ = 20480; SMALL = 147456
STAT = SMALL; CSX = SMALL + 1024; PL = SMALL + 5120; PA = PL + 2048; PH = PA + 8192
SCX = 40960 + 4096
HXL = CSX
XS4 = 4 * 4096
LDS_BYTES = 163840
assert PH + 1024 <= LDS_BYTES
WS_A2 = 0; A2_STEP = 131072; WS_B2 = 96 * A2_STEP; B2_STEP = 40960
WS_FLG = WS_B2 + 96 * B2_STEP
F_BF = 131072; F_T = F_BF + 196608; F_E = F_T + 4096; F_TS = 524288; F_XB = 786432; F_W2 = F_XB + 1024 * 5120; F_WF = F_W2 + 819200; F_ST = F_WF + 51200; F_SIZE = F_ST + 16384
assert F_E + 20 * 8192 <= F_TS
def BSLOT(j): k = j % 7; return XST + XSZ * k if k < 4 else XSZ * (k - 4)
OOB = 0x7F000000

S_X, S_W, S_A2, S_B2, S_F, S_OUT, S_P0, S_P1, S_E = 40, 44, 48, 52, 56, 64, 68, 72, 76
sWST, sTOK, sPX, sPW = 60, 61, 62, 63
sRB, sCG, sWV, sT0, sT1, sT2, sT3 = 80, 81, 82, 83, 84, 85, 86
sXO, sWO, sM0X, sM0W = 87, 88, 89, 90
sSO = [91, 92, 93, 94]
sQ0 = 95
sMASK = 96
sA2O, sB2O, sTMO, sFLO = 98, 99, 100, 101
sCOL = [3, 4, 5]
sW0 = 6
sG = 7
P_X, P_LRE, P_LIM, P_BRE, P_BIM, P_CRE, P_CIM, P_LDT, P_DSK, P_BX, P_WG, P_WU, P_WD, P_OUT, P_DBG, P_WS = [8 + 2 * i for i in range(16)]
sQ1, sQ2 = 14, 15
sBFO, sBD = 16, 17
sKH, sM0B = 10, 11
sKH, sM0B = 28, 29
sRB2, sA2B = 30, 35
sR0, sR1, sR2, sR3 = 10, 11, 12, 13
sC2 = 34

def srd(base): return f"s[{base}:{base+3}]"
def v(i, n=1): return f"v{i}" if n == 1 else f"v[{i}:{i+n-1}]"
def a(i, n=1): return f"a{i}" if n == 1 else f"a[{i}:{i+n-1}]"
def p2(r): return f"v[{r}:{r+1}]"

class B:
    def __init__(self): self.l = []
    def __call__(self, text):
        i = I(text); self.l.append(i); return i
    def add(self, *ins):
        for i in ins:
            if isinstance(i, (list, tuple)): self.l.extend(i)
            else: self.l.append(i)
    def srd(self, dst, ptr, nbytes, off=0):
        if off:
            self(f"s_add_u32 s{dst}, s{ptr}, {off}"); self(f"s_addc_u32 s{dst+1}, s{ptr+1}, 0")
            self(f"s_and_b32 s{dst+1}, s{dst+1}, 0xffff")
        else:
            self(f"s_mov_b32 s{dst}, s{ptr}"); self(f"s_and_b32 s{dst+1}, s{ptr+1}, 0xffff")
        self(f"s_mov_b32 s{dst+2}, {nbytes}"); self(f"s_mov_b32 s{dst+3}, 0x20000")

STP = [26, 0]
def stamp_ins(name, lvl=1):
    if OPT['stamps'] and (OPT['stamps'] == lvl or lvl == 2): return [I(f"<ST {name}>:")]
    return []
def stamp(b, k, lvl=1): b.add(stamp_ins(str(k), lvl))
def resolve_stamps(l, k0):
    out = []; names = []; k = k0
    for i in l:
        if i.text.startswith('<ST '):
            if k > 0: out.append(I(f"v_writelane_b32 v0, s{STP[(k-1)%2]}, {k-1}"))
            out.append(I(f"s_memtime s[{STP[k%2]}:{STP[k%2]+1}]"))
            names.append(i.text[4:-2]); k += 1
        else: out.append(i)
    assert k <= 62
    return out, names

NT = " nt" if OPT['nt'] else ""

vLANE, vT0, vT1, vT2, vT3 = 1, 2, 3, 4, 5
vXD = 6; vXR = 10; vWD = 14; vWR = 18; vWD2 = 26; vWR2 = 30
vST = 34; vL16 = 35
vSUM = 36; vSQ = 40; vCS = 44
vPW = 52
vPRE = 53
vSEL = 60
vFR = 64; NF = 5; LA = 3
vFLG, vFLO = 84, 85
vK1, vK2, vKC = 86, 87, 88
vBFO = 89
vA = 90
vXM = 92; vQ = 100
vE = 104
vAPF, vBPF, vW2P = 124, 125, 126
vACC = 128

slow_paths = []
poll_id = [0]

def slow_loop(b, issue, checker, sleep=2):
    k = poll_id[0]; poll_id[0] += 1
    checker(b)
    b(f"s_cbranch_scc1 L_slow{k}")
    b(f"L_back{k}:")
    sp = B()
    sp(f"L_slow{k}:")
    sp(f"s_sleep {sleep}")
    issue(sp)
    sp("s_waitcnt vmcnt(0)")
    sp(f"s_sub_u32 s{sTMO}, s{sTMO}, 1")
    sp(f"s_cbranch_scc1 L_back{k}")
    checker(sp)
    sp(f"s_cbranch_scc1 L_slow{k}")
    sp(f"s_branch L_back{k}")
    slow_paths.append(sp)

def af_issue(level):
    return lambda bb: bb(f"buffer_load_dword v{vFLG}, v{vFLO}, {srd(S_F)}, 0 offen offset:{4*(level-1)} sc1")
def af_check(which):
    def f(bb):
        bb(f"v_cmp_ne_u32 vcc, s{sTOK}, v{vFLG}")
        if which == 'ffn': bb(f"s_and_b64 vcc, vcc, s[{sMASK}:{sMASK+1}]")
        else: bb("s_cmp_lg_u64 vcc, 0")
    return f
def bf_issue(which):
    def f(bb):
        if which == 'ffn': bb("s_mov_b64 exec, 0xfff")
        if which == 'ffw': bb("s_mov_b32 exec_lo, 0xfff")
        bb(f"buffer_load_dword v{vFLG}, v{vBFO}, {srd(S_F)}, 0 offen sc1")
        if which != 'all': bb("s_mov_b64 exec, -1")
    return f
def bf_check(which):
    def f(bb):
        bb(f"v_cmp_ne_u32 vcc, s{sTOK}, v{vFLG}")
        if which == 'ffn': bb("s_and_b64 vcc, vcc, 0xfff")
        else:
            if which == 'ffw': bb("s_and_b32 vcc_lo, vcc_lo, 0xfff")
            bb("s_cmp_lg_u64 vcc, 0")
    return f
def poll_pair(issue, check, nm=None):
    bi = B(); issue(bi); bc = B()
    if nm: stamp(bc, nm + 'a', 3)
    slow_loop(bc, issue, check)
    if nm: stamp(bc, nm, 3)
    return bi.l, bc.l

def pf_ins(vo, srdb, so, sc=""):
    if OPT['pfnt']: sc += " nt"
    i = I(f"buffer_load_dword a255, v{vo}, {srd(srdb)}, {so} offen{sc}")
    i.wr = set()
    return i

def a_pf(i0, n):
    if not OPT['apf']: return []
    out = []
    while n > 0:
        k = min(n, 31)
        out += [I(f"s_add_u32 s{sQ1}, s{sA2B}, {i0*2*A2_STEP}"), I(f"s_bfm_b64 exec, {2*k}, 0"), pf_ins(vAPF, S_A2, f"s{sQ1}", " sc1"), I("s_mov_b64 exec, -1")]
        i0 += k; n -= k
    return out
def b_pf(h):
    if not OPT['bpf']: return []
    l = [I(f"s_lshl1_add_u32 s{sQ1}, s{sBD}, s{sB2O}")]
    if h: l.append(I(f"s_add_u32 s{sQ1}, s{sQ1}, {48*B2_STEP}"))
    return l + [pf_ins(vBPF, S_B2, f"s{sQ1}", " sc1")]

def x_dma(c):
    b = B()
    b(f"s_add_u32 m0, s{sM0X}, {(c % NX) * 4096}")
    toks = [b(f"buffer_load_dwordx4 v{vXD+i}, {srd(S_X)}, s{sXO} offen offset:{1024*i}{NT} lds") for i in range(4)]
    b(f"s_add_u32 s{sXO}, s{sXO}, 128")
    return b.l, toks

def w_dma(cc, vbase, step, newoff=None):
    b = B()
    if newoff is not None: b(f"s_mov_b32 s{sWO}, s{newoff}")
    b(f"s_add_u32 m0, s{sM0W}, {RING + (cc % NSLOT) * 16384}")
    if vbase is None: toks = [b(f"buffer_load_dwordx4 v{vL16}, {srd(S_F)}, s{sWO} offen offset:{1024*i} sc1 lds") for i in range(4)]
    else: toks = [b(f"buffer_load_dwordx4 v{vbase+i}, {srd(S_W)}, s{sWO} offen offset:{1024*i}{NT} lds") for i in range(4)]
    b(f"s_add_u32 s{sWO}, s{sWO}, {step}")
    return b.l, toks

HEAD = {}
def prologue():
    b = B()
    b("s_cmp_ge_u32 s2, 256")
    b("s_cbranch_scc1 L_end")
    b("s_load_dwordx16 s[8:23], s[0:1], 0")
    b("s_load_dwordx16 s[24:39], s[0:1], 64")
    b(f"v_and_b32 v{vLANE}, 63, v0")
    b(f"v_lshrrev_b32 v{vT0}, 6, v0")
    b(f"v_lshlrev_b32 v{vL16}, 4, v{vLANE}")
    b(f"v_readfirstlane_b32 s{sWV}, v{vT0}")
    if OPT['warm']:
        b(f"s_getpc_b64 s[{sT1}:{sT2}]")
        b("L_pc0:")
        b(f"s_lshr_b32 s{sT0}, s2, 3")
        b(f"s_min_u32 s{sT0}, s{sT0}, NPAGES_M1")
        b(f"s_lshl_b32 s{sT0}, s{sT0}, 12")
        b(f"v_lshlrev_b32 v{vT1}, 4, v0")
        b(f"v_add_u32 v{vT1}, s{sT0}, v{vT1}")
        i = b(f"global_load_dword a255, v{vT1}, s[{sT1}:{sT2}]"); i.wr = set()
    b(f"s_and_b32 s{sRB}, s2, 1"); b(f"s_lshl_b32 s{sRB}, s{sRB}, 3")
    b(f"s_lshr_b32 s{sT0}, s2, 3"); b(f"s_and_b32 s{sT3}, s{sT0}, 7"); b(f"s_add_u32 s{sRB}, s{sRB}, s{sT3}")
    b(f"s_lshr_b32 s{sT0}, s{sT0}, 3")
    if OPT['map']:
        b(f"s_bfe_u32 s{sCG}, s2, 0x20001"); b(f"s_lshl2_add_u32 s{sCG}, s{sT0}, s{sCG}")
    else:
        b(f"s_and_b32 s{sCG}, s2, 6"); b(f"s_lshl_b32 s{sCG}, s{sCG}, 1"); b(f"s_add_u32 s{sCG}, s{sCG}, s{sT0}")
    b(f"s_lshl_b32 s{sXO}, s{sRB}, 2"); b(f"s_add_u32 s{sPX}, s{sXO}, s{sT0}"); b(f"s_lshl_b32 s{sPX}, s{sPX}, 2")
    b(f"s_add_u32 s{sPX}, s{sPX}, s{sWV}"); b(f"s_mul_i32 s{sPX}, s{sPX}, 10240")
    b(f"s_add_u32 s{sXO}, s{sXO}, s{sWV}"); b(f"s_mul_i32 s{sXO}, s{sXO}, 40960")
    b(f"s_mul_i32 s{sM0X}, s{sWV}, {XSZ}"); b(f"s_add_u32 s{sM0X}, s{sM0X}, {XST}")
    b(f"s_lshl_b32 s{sM0W}, s{sWV}, 12")
    b(f"s_and_b32 s{sT2}, s{sWV}, 1")
    b(f"s_lshl_b32 s{sT3}, s{sT3}, 1"); b(f"s_add_u32 s{sT3}, s{sT3}, s{sT2}"); b(f"s_lshl_b32 s{sT3}, s{sT3}, 2")
    b(f"v_and_b32 v{vE}, 7, v{vLANE}")
    b(f"v_lshrrev_b32 v{vT1}, 4, v{vLANE}")
    b(f"v_xor_b32 v{vT0}, v{vE}, v{vT1}")
    b(f"v_lshlrev_b32 v{vT0}, 4, v{vT0}")
    b(f"v_xor_b32 v{vT1}, 64, v{vT0}")
    b(f"v_lshrrev_b32 v{vT2}, 3, v{vLANE}")
    b(f"v_mul_u32_u24 v{vT3}, 1280, v{vT2}")
    b(f"v_lshl_add_u32 v{vE+8}, v{vE}, 7, v{vT3}")
    b(f"v_and_b32 v{vE+2}, 3, v{vLANE}"); b(f"v_add_u32 v{vE+2}, s{sT3}, v{vE+2}")
    b(f"v_lshrrev_b32 v{vE+3}, 2, v{vLANE}")
    b(f"s_cmp_ge_u32 s{sCG}, 11")
    b("s_cbranch_scc1 L_h_ssm")
    for i in range(4):
        b(f"v_add_u32 v{vXD+i}, v{vT3}, v{vT0 if i % 2 == 0 else vT1}")
        if i: b(f"v_add_u32 v{vXD+i}, {i*(10240-1024)}, v{vXD+i}")
    b(f"s_mul_i32 s{sT0}, s{sCG}, 320"); b(f"s_and_b32 s{sT1}, s{sCG}, 1"); b(f"s_lshl_b32 s{sT3}, s{sT1}, 6")
    b(f"s_add_u32 s{sCOL[0]}, s{sT0}, s{sT3}"); b(f"s_add_u32 s{sCOL[1]}, s{sCOL[0]}, 128")
    b(f"s_xor_b32 s{sT1}, s{sT1}, 1"); b(f"s_lshl_b32 s{sT1}, s{sT1}, 8"); b(f"s_add_u32 s{sCOL[2]}, s{sT0}, s{sT1}")
    b(f"s_mov_b32 s{sPW}, s{sCOL[0]}")
    b(f"s_and_b32 s{sT1}, s{sWV}, 2"); b(f"s_lshl_b32 s{sT1}, s{sT1}, 1")
    b(f"v_bfe_u32 v{vE+1}, v{vLANE}, 4, 1"); b(f"v_lshlrev_b32 v{vE+1}, 1, v{vE+1}"); b(f"v_or_b32 v{vE+1}, s{sT1}, v{vE+1}")
    b(f"v_xor_b32 v{vE}, v{vE}, v{vE+1}"); b(f"v_lshlrev_b32 v{vE}, 4, v{vE}")
    b(f"v_mul_u32_u24 v{vE+1}, 3456, v{vT2}"); b(f"v_add_u32 v{vE}, v{vE}, v{vE+1}")
    b(f"s_mul_i32 s{sT3}, s{sT2}, {32*3456}")
    b(f"v_add_u32 v{vWD}, s{sT3}, v{vE}")
    for i in range(1, 4): b(f"v_add_u32 v{vWD+i}, {i*(8*3456-1024)}, v{vWD}")
    b(f"v_lshl_add_u32 v{vPW}, v{vE+3}, 6, v{vE+2}"); b(f"v_mul_u32_u24 v{vPW}, 3456, v{vPW}")
    if OPT['hx']:
        b(f"s_lshl1_add_u32 s{sT3}, s{sRB}, s{sT2}"); b(f"s_mul_i32 s{sT3}, s{sT3}, {20*3456}")
        b(f"v_lshrrev_b32 v{vE+9}, 1, v{vLANE}"); b(f"v_mul_u32_u24 v{vE+9}, {3456-256}, v{vE+9}")
        b(f"v_lshl_add_u32 v{vE+9}, v{vLANE}, 7, v{vE+9}"); b(f"v_add_u32 v{vE+9}, s{sT3}, v{vE+9}")
    b(f"s_mov_b32 s{sWST}, {64*3456}"); b(f"s_mov_b32 s{S_W+2}, {640*3456}")
    b("s_waitcnt lgkmcnt(0)")
    b(f"s_cmp_ge_u32 s{sWV}, 2")
    b(f"s_cselect_b32 s{S_W}, s{P_WU}, s{P_WG}"); b(f"s_cselect_b32 s{S_W+1}, s{P_WU+1}, s{P_WG+1}")
    b("s_branch L_h_join")
    b("L_h_ssm:")
    b(f"s_sub_u32 s{sG}, s{sCG}, 11")
    b(f"v_lshrrev_b32 v{vE}, 2, v{vT2}"); b(f"v_lshlrev_b32 v{vE+4}, 4, v{vE}")
    b(f"v_and_b32 v{vE+1}, 1, v{vT2}"); b(f"v_lshl_add_u32 v{vE+4}, v{vE+1}, 3, v{vE+4}")
    b(f"v_bfe_u32 v{vE+1}, v{vT2}, 1, 1"); b(f"v_add_u32 v{vE+4}, v{vE+4}, v{vE+1}")
    b(f"v_mul_u32_u24 v{vE+4}, 1280, v{vE+4}")
    for i in range(4):
        b(f"v_add_u32 v{vXD+i}, v{vE+4}, v{vT0 if i % 2 == 0 else vT1}")
        if i: b(f"v_add_u32 v{vXD+i}, {i*(2560-1024)}, v{vXD+i}")
    b(f"s_mul_i32 s{sPW}, s{sG}, {128*1280}")
    b(f"s_mul_i32 s{sT3}, s{sT2}, {32*1280}")
    b(f"s_add_u32 s{sCOL[0]}, s{sPW}, s{sT3}"); b(f"s_add_u32 s{sCOL[1]}, s{sCOL[0]}, {64*1280}")
    b(f"v_lshlrev_b32 v{vE}, 3, v{vE}")
    b(f"v_and_b32 v{vE+1}, 3, v{vT2}"); b(f"v_add_u32 v{vE}, v{vE}, v{vE+1}"); b(f"v_mul_u32_u24 v{vE}, 1280, v{vE}")
    for i in range(4):
        b(f"v_add_u32 v{vWD+i}, v{vE}, v{vT0 if i % 2 == 0 else vT1}")
        if i: b(f"v_add_u32 v{vWD+i}, {(16*(i>>1) + 4*(i&1))*1280 - 1024*i}, v{vWD+i}")
    b(f"v_mul_u32_u24 v{vPW}, 1280, v{vE+2}"); b(f"v_lshl_add_u32 v{vPW}, v{vE+3}, 7, v{vPW}")
    if OPT['hx']:
        b(f"s_lshl1_add_u32 s{sT3}, s{sRB}, s{sT2}"); b(f"s_mul_i32 s{sT3}, s{sT3}, 5120")
        b(f"v_lshl_add_u32 v{vE+9}, v{vLANE}, 7, s{sT3}")
    b(f"s_mov_b32 s{sWST}, 128"); b(f"s_mov_b32 s{S_W+2}, {640*1280}")
    b("s_waitcnt lgkmcnt(0)")
    b(f"s_cmp_ge_u32 s{sWV}, 2")
    b(f"s_cselect_b32 s{S_W}, s{P_BIM}, s{P_BRE}"); b(f"s_cselect_b32 s{S_W+1}, s{P_BIM+1}, s{P_BRE+1}")
    b("L_h_join:")
    stamp(b, 0, 2)
    b(f"s_and_b32 s{S_W+1}, s{S_W+1}, 0xffff"); b(f"s_mov_b32 s{S_W+3}, 0x20000")
    b.srd(S_X, P_X, 2621440)
    if OPT['wsoff']: b(f"s_add_u32 s{P_WS}, s{P_WS}, {OPT['wsoff'] << 20}"); b(f"s_addc_u32 s{P_WS+1}, s{P_WS+1}, 0")
    if OPT['stamps']: b("s_memrealtime s[8:9]")
    b(f"s_add_u32 s{sT0}, s{P_WS}, {WS_FLG + F_T}"); b(f"s_addc_u32 s{sT1}, s{P_WS+1}, 0")
    b(f"s_mov_b32 s{sT2}, s{sT1}"); b(f"s_mov_b32 s{sT1}, s{sT0}")
    b(f"s_load_dword s{sTOK}, s[{sT1}:{sT2}], 0")
    def pfa():
        b("s_mov_b32 exec_lo, 0x0f0f0f0f"); b("s_mov_b32 exec_hi, 0x0f0f0f0f")
        b.add(pf_ins(vE + 8, S_X, f"s{sPX}"))
        b("s_mov_b64 exec, 0xffff")
        b.add(pf_ins(vPW, S_W, f"s{sPW}"))
        b("s_mov_b64 exec, -1")
    def pfb():
        b(f"s_add_u32 s{sPX}, s{sPX}, 512")
        b("s_mov_b32 exec_lo, 0x3f3f3f3f"); b("s_mov_b32 exec_hi, 0x3f3f3f3f")
        b.add(pf_ins(vE + 8, S_X, f"s{sPX}"))
        b("s_mov_b32 exec_lo, 0xffff0000"); b("s_mov_b32 exec_hi, 0xff")
        b.add(pf_ins(vPW, S_W, f"s{sPW}"))
        b("s_mov_b64 exec, -1")
    if OPT['exp']:
        def nop(): b("s_nop 15"); b("s_nop 15"); b("s_nop 15")
        def grp(c):
            xi, xt = x_dma(c); wi, wt = w_dma(c, vWD, f"s{sWST}", sCOL[0] if c == 0 else None)
            b.add(xi, wi); return xt + wt
        e = OPT['exp']
        nop()
        if e in (2, 3, 5): pfa(); stamp(b, 'pfa'); nop()
        if e in (3, 5): pfb(); stamp(b, 'pfb'); nop()
        if e in (2, 3): b("s_waitcnt vmcnt(0)"); stamp(b, 'pfw'); nop()
        if e in (6, 7):
            pfa(); b("s_waitcnt vmcnt(0)"); b("s_barrier"); b("s_sleep 20"); stamp(b, 'pfw'); nop()
            if e == 6:
                b(f"s_cmp_eq_u32 s{sWV}, 0"); b(f"s_cselect_b32 s{sPX}, s{sPX}, {OOB}"); b(f"s_cselect_b32 s{sPW}, s{sPW}, {OOB}")
            pfb(); stamp(b, 'pfb'); nop()
        tk = {}
        D = 1 if e in (1, 2, 3, 6, 7) else 2
        for c in range(10 + D):
            if c < 10: tk[c] = grp(c); stamp(b, f'i{c}'); nop()
            if c - D + 1 >= 0 and c - D + 1 < 10: b.add(W(tk[c - D + 1])); stamp(b, f'w{c-D+1}'); nop()
        b.srd(S_F, P_WS, F_SIZE, WS_FLG)
        b("s_memrealtime s[30:31]")
        b("s_waitcnt lgkmcnt(0)")
        stamp(b, 'end', 2)
        b(f"v_writelane_b32 v0, s30, 63")
        b(f"v_writelane_b32 v0, s8, 62")
        b(f"s_lshl_b32 s{sT0}, s2, 2"); b(f"s_add_u32 s{sT0}, s{sT0}, s{sWV}"); b(f"s_lshl_b32 s{sT0}, s{sT0}, 8")
        b(f"s_add_u32 s{sT0}, s{sT0}, {F_TS}")
        b(f"v_lshlrev_b32 v{vT0}, 2, v{vLANE}")
        b(f"buffer_store_dword v0, v{vT0}, {srd(S_F)}, s{sT0} offen")
        b("s_endpgm")
        OPT['stamps'] = 0
    xi, xt = x_dma(0); wi, wt = w_dma(0, vWD, f"s{sWST}", sCOL[0])
    HEAD['xt0'] = xt; HEAD['wt0'] = wt; HEAD['x0w0'] = xi + wi
    if OPT['hx']:
        b(f"s_lshl4_add_u32 s{sT3}, s{sRB}, s{sCG}"); b(f"s_lshl2_add_u32 s{sT3}, s{sT3}, s{sWV}"); b(f"s_mul_i32 s{sT3}, s{sT3}, 2560")
        b(f"v_lshlrev_b32 v{vE+10}, 7, v{vLANE}")
        b("s_bfm_b64 exec, 20, 0"); b.add(pf_ins(vE + 10, S_X, f"s{sT3}"))
        b("s_bfm_b64 exec, 40, 0"); b.add(pf_ins(vE + 9, S_W, f"s{sPW}"))
        b("s_mov_b64 exec, -1")
    elif not OPT['pf']: b.add(xi, wi)
    elif OPT['order'] == 0: pfa(); b.add(xi, wi); pfb()
    elif OPT['order'] == 1: b.add(xi, wi); pfa(); pfb()
    elif OPT['order'] == 2: pfa(); pfb()
    elif OPT['order'] == 3: pfa()
    HEAD['pfb'] = B(); bsave = b; b = HEAD['pfb']; pfb(); b = bsave
    b(f"v_cmp_gt_u32 vcc, 40, v{vLANE}"); b(f"v_mov_b32 v{vE}, {OOB}")
    b(f"v_cndmask_b32 v{vPW}, v{vE}, v{vPW}, vcc")
    stamp(b, 'iss', 2)
    b(f"s_mov_b32 s{sTMO}, 200000")
    b(f"s_cmp_eq_u32 s{sWV}, 3"); b(f"s_cselect_b32 s{sW0}, 0, {OOB}")
    b(f"v_and_b32 v{vST}, 15, v{vLANE}"); b(f"v_lshlrev_b32 v{vST}, 4, v{vST}")
    b(f"v_bfe_u32 v{vE}, v{vLANE}, 4, 1"); b(f"v_lshl_add_u32 v{vST}, v{vE}, 10, v{vST}")
    b(f"v_lshrrev_b32 v{vE}, 5, v{vLANE}"); b(f"v_lshl_add_u32 v{vST}, v{vE}, 8, v{vST}")
    b(f"s_lshl_b32 s{sT0}, s{sRB}, 2"); b(f"s_add_u32 s{sT0}, s{sT0}, s{sWV}"); b(f"s_lshl_b32 s{sT3}, s{sT0}, 11")
    b(f"v_add_u32 v{vST}, s{sT3}, v{vST}")
    b(f"s_lshl_b32 s{sFLO}, s{sT0}, 4"); b(f"s_add_u32 s{sFLO}, s{sFLO}, s{sCG}"); b(f"s_lshl_b32 s{sFLO}, s{sFLO}, 7")
    b.srd(S_A2, P_WS, 94 * A2_STEP)
    b.srd(S_B2, P_WS, 94 * B2_STEP, WS_B2)
    b.srd(S_F, P_WS, F_SIZE, WS_FLG)
    b.srd(S_OUT, P_OUT, 2048 * 640 * 4)
    sel_setup(b)
    flag_setup(b)
    if OPT['pf'] and OPT['order'] >= 2 and not OPT['hx']: b.add(xi, wi)
    b(f"s_cmp_ge_u32 s{sCG}, 11")
    b("s_cbranch_scc1 L_ssm")
    return b

def frag_addr_setup(b):
    b(f"v_and_b32 v{vE+2}, 31, v{vLANE}"); b(f"v_lshlrev_b32 v{vE+2}, 7, v{vE+2}")
    b(f"v_bfe_u32 v{vE}, v{vLANE}, 1, 3")
    b(f"v_lshrrev_b32 v{vE+1}, 5, v{vLANE}")
    b(f"v_xor_b32 v{vE}, v{vE}, v{vE+1}")
    b(f"s_lshl_b32 s{sT0}, s{sT0}, 1")
    b(f"v_xor_b32 v{vE}, s{sT0}, v{vE}")
    for k in range(4):
        b(f"v_xor_b32 v{vE+1}, {2*k}, v{vE}")
        b(f"v_lshl_add_u32 v{vXR+k}, v{vE+1}, 4, v{vE+2}")

def sel_setup(b):
    b(f"v_lshrrev_b32 v{vE}, 2, v{vLANE}"); b(f"v_lshrrev_b32 v{vE+1}, 4, v{vLANE}")
    b(f"v_xor_b32 v{vE}, v{vE}, v{vE+1}"); b(f"v_and_b32 v{vE}, 1, v{vE}")
    b(f"v_cmp_eq_u32 vcc, 0, v{vE}")
    b(f"v_mov_b32 v{vE+1}, 0x3f803f80")
    b(f"v_cndmask_b32 v{vSEL}, 0, v{vE+1}, vcc")
    for i in range(1, 4): b(f"v_mov_b32 v{vSEL+i}, v{vSEL}")

def flag_setup(b):
    b(f"s_and_b32 s{sRB2}, s2, 1"); b(f"s_bfe_u32 s{sT0}, s2, 0x10001"); b(f"s_lshl1_add_u32 s{sRB2}, s{sRB2}, s{sT0}")
    b(f"s_bfe_u32 s{sT0}, s2, 0x20003"); b(f"s_lshl2_add_u32 s{sRB2}, s{sRB2}, s{sT0}")
    b(f"s_mul_i32 s{sT0}, s{sT0}, 1280")
    b(f"v_mul_u32_u24 v{vE}, 26, v{vLANE}"); b(f"v_lshrrev_b32 v{vE}, 8, v{vE}")
    b(f"v_mul_u32_u24 v{vE}, {8*B2_STEP - 1280}, v{vE}"); b(f"v_lshl_add_u32 v{vE}, v{vLANE}, 7, v{vE}"); b(f"v_add_u32 v{vE}, s{sT0}, v{vE}")
    b(f"v_cmp_gt_u32 vcc, 60, v{vLANE}"); b(f"v_mov_b32 v{vE+1}, {OOB}"); b(f"v_cndmask_b32 v{vBPF}, v{vE+1}, v{vE}, vcc")
    b(f"s_bfe_u32 s{sKH}, s2, 0x10002")
    b(f"s_lshr_b32 s{sC2}, s2, 5"); b(f"s_lshl_b32 s{sT0}, s{sC2}, 8"); b(f"s_lshl3_add_u32 s{sC2}, s{sKH}, s{sC2}")
    b(f"v_lshrrev_b32 v{vE}, 1, v{vLANE}"); b(f"v_lshl_add_u32 v{vE}, v{vE}, 18, s{sT0}")
    b(f"v_and_b32 v{vE+1}, 1, v{vLANE}"); b(f"v_lshl_add_u32 v{vAPF}, v{vE+1}, 7, v{vE}")
    b(f"s_lshl2_add_u32 s{sT3}, s{sRB2}, s{sWV}"); b(f"s_lshl_b32 s{sT3}, s{sT3}, 11")
    b(f"v_and_b32 v{vFLO}, 15, v{vLANE}")
    b(f"v_cmp_gt_u32 s[{sMASK}:{sMASK+1}], 11, v{vFLO}")
    b(f"v_lshl_add_u32 v{vFLO}, v{vFLO}, 7, s{sT3}")
    b(f"s_lshl_b32 s{sT0}, s{sKH}, 17"); b(f"s_add_u32 s{sA2O}, s{sT3}, s{sT0}"); b(f"s_mov_b32 s{sA2B}, s{sA2O}")
    b(f"s_lshl_b32 s{sT0}, s{sKH}, 10"); b(f"v_add_u32 v{vA}, s{sT0}, v{vL16}"); b(f"v_xor_b32 v{vA+1}, 1024, v{vA}")
    b(f"s_and_b32 s{sT2}, s{sC2}, 7"); b(f"s_mul_i32 s{sB2O}, s{sT2}, 5120")
    b(f"s_lshl_b32 s{sT0}, s{sWV}, 1"); b(f"s_add_u32 s{sT0}, s{sT0}, s{sKH}"); b(f"s_mul_i32 s{sT1}, s{sT0}, {B2_STEP}")
    b(f"s_add_u32 s{sB2O}, s{sB2O}, s{sT1}"); b(f"s_lshl_b32 s{sT1}, s{sKH}, 12"); b(f"s_add_u32 s{sB2O}, s{sB2O}, s{sT1}")
    b(f"s_mul_i32 s{sBD}, s{sKH}, -2048")
    b(f"s_mul_i32 s{sM0B}, s{sWV}, 5120")
    b(f"v_lshrrev_b32 v{vE}, 1, v{vLANE}"); b(f"v_min_u32 v{vE}, 11, v{vE}")
    b(f"v_lshl_add_u32 v{vE}, v{vE}, 3, s{sT0}"); b(f"v_min_u32 v{vE}, 93, v{vE}")
    b(f"v_cmp_gt_u32 vcc, 54, v{vE}")
    b(f"v_and_b32 v{vE+1}, -2, v{vE}"); b(f"v_cndmask_b32 v{vE}, v{vE+1}, v{vE}, vcc")
    b(f"s_mul_i32 s{sT0}, s{sT2}, 5"); b(f"s_lshr_b32 s{sT0}, s{sT0}, 2"); b(f"s_lshl_b32 s{sT2}, s{sT2}, 1")
    b(f"v_mov_b32 v{vE+1}, s{sT2}"); b(f"v_mov_b32 v{vE+2}, s{sT0}"); b(f"v_cndmask_b32 v{vE+1}, v{vE+1}, v{vE+2}, vcc")
    b(f"v_lshl_add_u32 v{vE}, v{vE}, 4, v{vE+1}"); b(f"v_and_b32 v{vE+1}, 1, v{vLANE}"); b(f"v_add_u32 v{vE}, v{vE}, v{vE+1}")
    b(f"v_lshlrev_b32 v{vE}, 7, v{vE}"); b(f"v_add_u32 v{vBFO}, {F_BF}, v{vE}")

def tok_setup(b):
    b("s_waitcnt lgkmcnt(0)")
    b(f"s_mul_i32 s{sTOK}, s{sTOK}, 0x9E3779B1"); b(f"s_add_u32 s{sTOK}, s{sTOK}, 0x85EBCA6B")
    b(f"s_or_b32 s{sTOK}, s{sTOK}, 0x101")

def flag_store(level, tmp):
    b = B()
    b(f"v_mov_b32 v{tmp}, s{sTOK}")
    b(f"buffer_store_dword v{tmp}, off, {srd(S_F)}, s{sFLO} offset:{4*(level-1)} sc1")
    return b.l

def bf_store(tmp):
    b = B()
    b(f"v_mov_b32 v{tmp}, s{sTOK}")
    b(f"buffer_store_dword v{tmp}, off, {srd(S_F)}, s{sBFO} sc1")
    return b.l

def bf16_round(b, dst, src):
    b(f"v_cvt_pk_bf16_f32 v{dst}, v{src}, v{src}")
    b(f"v_and_b32 v{dst}, 0xffff0000, v{dst}")

def stats_final(time_of_row, E, glob=False):
    b = B()
    t = E + 4
    b(f"v_and_b32 v{t}, 3, v{vLANE}")
    b(f"v_cmp_eq_u32 vcc, 1, v{t}")
    b(f"v_cndmask_b32 v{vSQ}, v{vSQ}, v{vSQ+1}, vcc")
    b(f"v_cmp_eq_u32 vcc, 2, v{t}")
    b(f"v_cndmask_b32 v{vSQ}, v{vSQ}, v{vSQ+2}, vcc")
    b(f"v_cmp_eq_u32 vcc, 3, v{t}")
    b(f"v_cndmask_b32 v{vSQ}, v{vSQ}, v{vSQ+3}, vcc")
    b(f"v_mov_b32 v{vSQ+1}, v{vSQ}")
    b(f"v_mul_f32 v{vSUM}, {f32(1/640)}, v{vSUM}")
    b(f"v_permlane32_swap_b32 v{vSQ}, v{vSQ+1}")
    b(f"v_add_f32 v{vSQ}, v{vSQ}, v{vSQ+1}")
    b(f"v_mul_f32 v{vSQ}, {f32(1/640)}, v{vSQ}")
    b(f"v_fma_f32 v{vSQ}, -v{vSUM}, v{vSUM}, v{vSQ}")
    b(f"v_max_f32 v{vSQ}, 0, v{vSQ}")
    bf16_round(b, vSQ, vSQ)
    b(f"v_add_f32 v{vSQ}, {f32(1e-5)}, v{vSQ}")
    bf16_round(b, vSQ, vSQ)
    b(f"v_sqrt_f32 v{vSQ}, v{vSQ}")
    b(f"v_cvt_pk_bf16_f32 v{E+3}, -v{vSUM}, -v{vSUM}")
    bf16_round(b, E + 2, vSQ)
    b(f"v_rcp_f32 v{E+1}, v{E+2}")
    b(f"v_and_b32 v{E}, 0xffff0000, v{E+3}")
    b(f"v_xor_b32 v{E}, 0x80000000, v{E}")
    b(f"v_cmp_gt_u32 vcc, 32, v{vLANE}")
    b(f"v_cndmask_b32 v{E+3}, 0, v{E+3}, vcc")
    time_of_row(b, t)
    b(f"v_lshlrev_b32 v{t}, 3, v{t}")
    if glob:
        b(f"buffer_store_dwordx2 v[{E}:{E+1}], v{t}, {srd(S_F)}, s{sR3} offen sc1")
        return b.l
    b(f"s_lshl_b32 s{sT1}, s{sWV}, 8"); b(f"s_add_u32 s{sT1}, s{sT1}, {STAT}")
    b(f"v_add_u32 v{t}, s{sT1}, v{t}")
    b(f"ds_write_b64 v{t}, v[{E}:{E+1}]")
    return b.l

def cs_pack(b, dst, src, tmp):
    b(f"v_cvt_pk_bf16_f32 v{tmp}, v{src}, v{src}")
    b(f"v_and_b32 v{tmp}, 0xffff0000, v{tmp}")
    b(f"v_sub_f32 v{dst}, v{src}, v{tmp}")
    b(f"v_cvt_pk_bf16_f32 v{dst}, v{tmp}, v{dst}")

class P2:
    def __init__(self):
        self.free = deque(); self.loc = {}; self.na = 0; self.btok = {}
    def give(self, kind, lo, hi):
        for r in range(lo, hi, 4): self.free.append((kind, r))
    def rn(self, g): return f"{g[0]}[{g[1]}:{g[1]+3}]"
    def ld(self):
        g = self.free.popleft()
        i, m = divmod(self.na, 2); self.na += 1; self.loc[(i, m)] = g
        l = [I(f"buffer_load_dwordx4 {self.rn(g)}, v{vA+m}, {srd(S_A2)}, s{sA2O} offen sc1")]
        if m == 1: l.append(I(f"s_add_u32 s{sA2O}, s{sA2O}, {2*A2_STEP}"))
        return l
    def bdma(self, j):
        gs = []; self.btok[j] = []
        for n in range(5):
            l = []
            if n == 0:
                l.append(I(f"s_add_u32 s{sQ2}, s{sB2O}, {j*8*B2_STEP}"))
                l.append(I(f"s_add_u32 m0, s{sM0B}, {BSLOT(j)}"))
            else:
                l.append(I(f"s_add_u32 s{sQ2}, s{sQ2}, s{sBD}"))
            if n == 4:
                l.append(I(f"s_add_u32 s{sQ2}, s{sQ2}, 4096"))
                l.append(I(f"s_add_u32 m0, s{sM0B}, {BSLOT(j) + 4096}"))
            t = I(f"buffer_load_dwordx4 v{vL16}, {srd(S_B2)}, s{sQ2} offen offset:{1024*(n%4)} sc1 lds")
            l.append(t); self.btok[j].append(t); gs.append(l)
        return gs

KEEP = [(0, 0), (1, 0), (0, 1), (1, 1), (0, 2)]
SEND = [(1, 4), (0, 4), (1, 3), (0, 3), (1, 2)]

def phase2(b, P, plan, synced, extra_pins=()):
    ACC = 216; BR = 128; NBR = 8; RX = 160; T = 36
    vOUT, vLB1, vLB2 = T, T + 1, T + 2
    vTT = T + 4; vMR = T + 6; vX = T + 10; vD = T + 20; vBASE = 180; vCK = 200
    sO = [sSO[0], sSO[1], sSO[2], sSO[3], sCOL[0]]
    def acc(m, n): return ACC + 4 * (2 * n + m)
    q = B()
    q(f"s_lshl2_add_u32 s{sT0}, s{sRB2}, s{sWV}"); q(f"s_lshl_b32 s{sT3}, s{sT0}, 8"); q(f"s_add_u32 s{sT3}, s{sT3}, {F_ST}"); q(f"s_mul_i32 s{sT0}, s{sT0}, {32*2560}")
    q(f"s_and_b32 s{sT2}, s{sC2}, 7"); q(f"s_mul_i32 s{sT2}, s{sT2}, 320"); q(f"s_add_u32 s{sT0}, s{sT0}, s{sT2}")
    q(f"v_and_b32 v{vTT}, 15, v{vLANE}")
    q(f"s_lshl_b32 s{sT1}, s{sKH}, 7")
    q(f"v_lshl_add_u32 v{vMR}, v{vTT}, 3, s{sT1}"); q(f"v_xor_b32 v{vMR+2}, 128, v{vMR}")
    q(f"buffer_load_dwordx2 {p2(vMR)}, v{vMR}, {srd(S_F)}, s{sT3} offen sc1"); q(f"buffer_load_dwordx2 {p2(vMR+2)}, v{vMR+2}, {srd(S_F)}, s{sT3} offen sc1")
    q(f"v_mul_u32_u24 v{vOUT}, 2560, v{vTT}"); q(f"v_and_b32 v{vTT}, 48, v{vLANE}")
    q(f"v_add3_u32 v{vOUT}, v{vOUT}, v{vTT}, s{sT0}")
    q(f"v_lshrrev_b32 v{vTT+1}, 1, v{vOUT}")
    q(f"v_add_u32 v{vTT}, s{sT2}, v{vTT}"); q(f"v_lshrrev_b32 v{vTT}, 1, v{vTT}")
    q.srd(S_P1, P_DSK, 1280)
    for t, (m, n) in enumerate(KEEP):
        o0 = m * 40960 + n * 64; o1 = (1 - m) * 40960 + (4 - n) * 64
        q(f"s_mul_i32 s{sO[t]}, s{sKH}, {o1 - o0}"); q(f"s_add_u32 s{sO[t]}, s{sO[t]}, {o0}")
        q(f"s_lshr_b32 s{sT1}, s{sO[t]}, 1")
        q(f"buffer_load_dwordx2 {p2(vX+2*t)}, v{vTT+1}, {srd(S_X)}, s{sT1} offen")
        q(f"s_and_b32 s{sT1}, s{sT1}, 255")
        q(f"buffer_load_dwordx2 {p2(vD+2*t)}, v{vTT}, {srd(S_P1)}, s{sT1} offen")
    q(f"s_lshl_b32 s{sT0}, s{sRB2}, 4"); q(f"s_add_u32 s{sT0}, s{sT0}, s{sC2}"); q(f"s_lshl_b32 s{sT0}, s{sT0}, 2"); q(f"s_add_u32 s{sT0}, s{sT0}, s{sWV}")
    q(f"s_mul_i32 s{sXO}, s{sT0}, 5120"); q(f"s_add_u32 s{sXO}, s{sXO}, {F_XB}")
    q(f"s_xor_b32 s{sT0}, s{sT0}, 32"); q(f"s_mul_i32 s{sWO}, s{sT0}, 5120"); q(f"s_add_u32 s{sWO}, s{sWO}, {F_XB}")
    q(f"s_add_u32 s{sPX}, s{sXO}, 4096"); q(f"s_add_u32 s{sPW}, s{sWO}, 4096")
    for k in range(1, 4): q(f"s_lshr_b32 s{S_P0+k}, s{sTOK}, {8*k}")
    q(f"s_mov_b32 s{S_P0}, s{sTOK}")
    q(f"v_mov_b32 v{T+3}, 0xff")
    q2 = B()
    for t, (m, n) in enumerate(KEEP):
        for k in range(4):
            src = vX + 2 * t + k // 2; dsrc = vD + 2 * t + k // 2
            xv, tt, d = vBASE + 4 * t + k, vTT, vTT + 1
            if k % 2 == 0:
                q2(f"v_lshlrev_b32 v{xv}, 16, v{src}"); q2(f"v_lshlrev_b32 v{d}, 16, v{dsrc}")
            else:
                q2(f"v_and_b32 v{xv}, 0xffff0000, v{src}"); q2(f"v_and_b32 v{d}, 0xffff0000, v{dsrc}")
            q2(f"v_sub_f32 v{tt}, v{xv}, v{vMR+2*m}"); bf16_round(q2, tt, tt)
            q2(f"v_mul_f32 v{tt}, v{tt}, v{vMR+2*m+1}"); bf16_round(q2, tt, tt)
            q2(f"v_mul_f32 v{tt}, v{tt}, v{d}"); bf16_round(q2, tt, tt)
            q2(f"v_add_f32 v{xv}, v{xv}, v{tt}")
    b(f"v_add_u32 v{vLB1}, 65536, v{vL16}"); b(f"v_add_u32 v{vLB2}, 131072, v{vL16}")
    SK = OPT['sk']
    seq = []
    frags = []
    def addf(i, n, ms):
        frags.append((i, n))
        for m in ms: seq.append((i, m, n, len(frags) - 1))
    for i in range(47 - SK):
        for n in range(5): addf(i, n, (0, 1))
    for i in range(47 - SK, 47): addf(i, 4, (0, 1)); addf(i, 3, (0, 1)); addf(i, 2, (1,))
    send_end = len(seq) - 1
    for i in range(47 - SK, 47): addf(i, 0, (0, 1)); addf(i, 1, (0, 1)); addf(i, 2, (0,))
    NG = len(seq); assert NG == 470
    first_use = {}; last_a = {}
    for g, (i, m, n, f) in enumerate(seq):
        first_use.setdefault(f, g); last_a[(i, m)] = g
    LAF = 5
    rd = {}
    def fread(f):
        i, n = frags[f]
        ad = BSLOT(i // 4) + (i % 4) * 5120 + n * 1024
        vb = [vL16, vLB1, vLB2][ad >> 16]
        rd[f] = I(f"ds_read_b128 {v(BR + 4*(f % NBR),4)}, v{vb} offset:{ad & 0xffff}")
        return rd[f]
    pins = [[] for _ in range(NG)]
    synced = set(synced)
    def sync_for(j, out):
        cover = [j] if j < 7 else [jj for jj in ((7, 8) if j < 9 else (9, 10, 11))]
        toks = []
        for jj in cover:
            if jj not in synced: toks += P.btok[jj]; synced.add(jj)
        out.append(W(toks)); out.append(I("s_barrier"))
    head = []
    if 0 not in synced: sync_for(0, head)
    for f in range(LAF): head.append(fread(f))
    b.add(head)
    items = deque()
    for p in plan:
        if p[0] == 'A': items.extend([('A',)] * p[1])
        else: items.append(p)
    busy = [0] * NG
    mf = []
    seen_chunk = {0}
    for g in range(NG):
        i, m, n, f = seq[g]
        assert (i, m) in P.loc, (g, i, m)
        d = acc(m, n)
        mf.append(I(f"v_mfma_f32_16x16x32_bf16 {v(d,4)}, {v(BR + 4*(f % NBR),4)}, {P.rn(P.loc[(i,m)])}, {'0' if i == 0 else v(d,4)}"))
        if last_a[(i, m)] == g: P.free.append(P.loc[(i, m)])
        if first_use[f] == g and f + LAF < len(frags):
            j = frags[f + LAF][0] // 4
            if j not in seen_chunk:
                seen_chunk.add(j)
                if j not in synced or j + 6 <= 11:
                    sync_for(j, pins[g])
                    if j + 6 <= 11:
                        for k, grp in enumerate(P.bdma(j + 6)):
                            pins[g + 13 + 4 * k] += grp; busy[g + 13 + 4 * k] = 1
                if j % 2 == 0: pins[g] += stamp_ins(f"p{j}", 2 if j in (6,) else 1)
                if j != 6: pins[g] += stamp_ins(f"p{j}", 3)
            pins[g].append(fread(f + LAF))
        elif items and not busy[g]:
            p = items[0]
            if p[0] == 'A':
                if P.free: pins[g] += P.ld(); items.popleft()
            elif g >= p[2]:
                pins[g] += p[1]; items.popleft()
    assert not items, items
    sb_ = B()
    for t, (m, n) in enumerate(SEND):
        d = acc(m, n)
        for k in range(4): sb_(f"v_bfi_b32 v{d+k}, v{T+3}, s{S_P0+k}, v{d+k}")
        sb_(f"buffer_store_dwordx4 {v(d,4)}, v{vL16}, {srd(S_F)}, s{sXO if t < 4 else sPX} offen offset:{1024*(t%4)} sc1")
    def rx_issue(bb):
        for t in range(5): bb(f"buffer_load_dwordx4 {v(RX+4*t,4)}, v{vL16}, {srd(S_F)}, s{sWO if t < 4 else sPW} offen offset:{1024*(t%4)} sc1")
    def rx_check(bb):
        for k in range(4):
            bb(f"v_xor_b32 v{vCK+k}, s{S_P0+k}, v{RX+k}")
            for t in range(1, 5): bb(f"v_bitop3_b32 v{vCK+k}, v{vCK+k}, v{RX+4*t+k}, s{S_P0+k} bitop3:0xf6")
        bb(f"v_or3_b32 v{vCK}, v{vCK}, v{vCK+1}, v{vCK+2}")
        bb(f"v_bitop3_b32 v{vCK}, v{vCK}, v{vCK+3}, v{T+3} bitop3:0xa8")
        bb(f"v_cmp_ne_u32 vcc, 0, v{vCK}")
        bb("s_cmp_lg_u64 vcc, 0")
    tq = B()
    tq(f"s_cmp_eq_u32 s2, 0"); tq(f"s_cselect_b32 s{sG}, s{sW0}, {OOB}")
    tq(f"v_and_b32 v{vCK+8}, 15, v{vLANE}"); tq(f"v_lshlrev_b32 v{vCK+8}, 7, v{vCK+8}")
    tq(f"v_lshrrev_b32 v{vCK+9}, 4, v{vLANE}"); tq(f"v_lshl_add_u32 v{vCK+8}, v{vCK+9}, 13, v{vCK+8}")
    def tk_issue(bb):
        for k in range(4):
            bb(f"s_add_u32 s{sQ0}, s{sG}, {32768*k}")
            bb(f"buffer_load_dword v{vCK+4+k}, v{vCK+8}, {srd(S_F)}, s{sQ0} offen sc1")
    def tk_check(bb):
        for k in range(4): bb(f"v_xor_b32 v{vCK+4+k}, s{sTOK}, v{vCK+4+k}")
        bb(f"v_or3_b32 v{vCK+4}, v{vCK+4}, v{vCK+5}, v{vCK+6}"); bb(f"v_or_b32 v{vCK+4}, v{vCK+4}, v{vCK+7}")
        bb(f"v_cmp_ne_u32 vcc, 0, v{vCK+4}")
        bb(f"s_cmp_eq_u32 s{sG}, 0"); bb("s_cselect_b64 vcc, vcc, 0"); bb("s_cmp_lg_u64 vcc, 0")
    tk_issue(tq)
    st = Stream()
    for g in range(NG):
        st.add(mf[g]); st.pin(g, *pins[g])
    for (g, l) in extra_pins: st.pin(g, *l)
    st.pin(send_end + 2, *stamp_ins('snd', 2))
    st.queue(sb_.l, send_end + 2, send_end + 12, name='send')
    ri = B(); rx_issue(ri)
    st.pin(min(send_end + 12 + OPT['xd'], NG - 1), *ri.l, *tq.l)
    st.queue(q.l, 20, 150, name='base0', rate=1)
    st.queue(q2.l, 170, send_end, name='base1', rate=1)
    b.add(st.schedule())
    stamp(b, 'pe', 2)
    for t, (m, n) in enumerate(KEEP):
        for h in range(2):
            r0 = acc(m, n) + 2 * h
            b(f"v_pk_add_f32 {p2(r0)}, {p2(r0)}, {p2(vBASE+4*t+2*h)}")
    slow_loop(b, rx_issue, rx_check, 1)
    stamp(b, 'rx', 2)
    for t, (m, n) in enumerate(KEEP):
        for h in range(2):
            r0 = acc(m, n) + 2 * h
            b(f"v_pk_add_f32 {p2(r0)}, {p2(r0)}, {p2(RX+4*t+2*h)}")
        b(f"buffer_store_dwordx4 {v(acc(m,n),4)}, v{vOUT}, {srd(S_OUT)}, s{sO[t]} offen{['', ' nt', ' sc1', ' sc0 sc1'][OPT['ost']]}")
    slow_loop(b, tk_issue, tk_check, 2)
    b(f"s_add_u32 s{sT0}, s{sG}, {F_T}")
    b(f"v_mov_b32 v{vT0}, s{sTOK}")
    b(f"buffer_store_dword v{vT0}, off, {srd(S_F)}, s{sT0} sc1")
    if OPT['stamps']:
        b("s_waitcnt vmcnt(0)")
        stamp(b, 'fin', 2)
        b("s_memrealtime s[30:31]")
        b("s_waitcnt lgkmcnt(0)")
        stamp(b, 'end', 2)
        b(f"v_writelane_b32 v0, s30, 63")
        b(f"v_writelane_b32 v0, s8, 62")
        b(f"s_lshl_b32 s{sT0}, s2, 2"); b(f"s_add_u32 s{sT0}, s{sT0}, s{sWV}"); b(f"s_lshl_b32 s{sT0}, s{sT0}, 8")
        b(f"s_add_u32 s{sT0}, s{sT0}, {F_TS}")
        b(f"v_lshlrev_b32 v{vT0}, 2, v{vLANE}")
        b(f"buffer_store_dword v0, v{vT0}, {srd(S_F)}, s{sT0} offen")
        if OPT['dbgts']:
            b.srd(S_P0, P_DBG, 256)
            b(f"v_readlane_b32 s{sT1}, v0, 0"); b(f"v_subrev_u32 v0, s{sT1}, v0")
            b(f"s_sub_u32 s30, s30, s8"); b(f"v_writelane_b32 v0, s30, 0")
            b(f"s_cmp_eq_u32 s2, {OPT['dbgts']-1}"); b(f"s_cselect_b32 s{sT0}, s{sW0}, {OOB}")
            b(f"buffer_store_dword v0, v{vT0}, {srd(S_P0)}, s{sT0} offen")
    b("s_endpgm")

GK1 = -2.0 * math.sqrt(2.0 / math.pi) * math.log2(math.e)
GK2 = GK1 * 0.044715

def ffn_epilogue(acc, so, tmp):
    b = B()
    for p in range(0, 8, 2):
        g = [acc + p, acc + p + 1]; u = [acc + 8 + p, acc + 9 + p]
        t = [tmp + 4 + (p % 4), tmp + 5 + (p % 4)]
        for k in range(2): b(f"v_mul_f32 v{t[k]}, v{g[k]}, v{g[k]}")
        for k in range(2): b(f"v_fma_f32 v{t[k]}, v{t[k]}, v{vK2}, v{vK1}")
        for k in range(2): b(f"v_mul_f32 v{t[k]}, v{g[k]}, v{t[k]}")
        for k in range(2): b(f"v_exp_f32 v{t[k]}, v{t[k]}")
        for k in range(2): b(f"v_mul_f32 v{u[k]}, v{g[k]}, v{u[k]}")
        for k in range(2): b(f"v_fma_f32 v{t[k]}, v{t[k]}, v{vKC}, v{vKC}")
        for k in range(2): b(f"v_rcp_f32 v{t[k]}, v{t[k]}")
        b(f"v_mul_f32 v{u[0]}, v{u[0]}, v{t[0]}")
        b(f"v_mul_f32 v{u[1]}, v{u[1]}, v{t[1]}")
        b(f"v_cvt_pk_bf16_f32 v{tmp + p//2}, v{u[0]}, v{u[1]}")
    tok = b(f"buffer_store_dwordx4 {v(tmp,4)}, v{vST}, {srd(S_A2)}, s{so} offen sc1")
    return b.l, tok

def interleave(main, extra, every):
    out = []; k = 0
    for n, i in enumerate(main):
        out.append(i)
        if n % every == every - 1 and k < len(extra): out += extra[k]; k += 1
    for e in extra[k:]: out += e
    return out

def ffn_path():
    b = B()
    vRP = 55; vRD = [26, 56]
    xi, xt, wi, wt = {}, {0: HEAD['xt0']}, {}, {0: HEAD['wt0']}
    CH = [(sb, c) for sb in range(3) for c in range(10 if sb < 2 else 5)]
    for cc, (sb, c) in enumerate(CH):
        if cc: wi[cc], wt[cc] = w_dma(cc, vWD if sb < 2 else None, 64 * 3456 if sb < 2 else 8192, sCOL[sb] if c == 0 else None)
    for c in range(1, 10): xi[c], xt[c] = x_dma(c)
    b(f"s_lshr_b32 s{sT0}, s{sWV}, 1")
    frag_addr_setup(b)
    for k in range(4): b(f"v_add_u32 v{vXR+k}, s{sM0X}, v{vXR+k}")
    mat, hh, r0, pc = vE, vE + 1, vE + 2, vE + 3
    b(f"v_bfe_u32 v{mat}, v{vLANE}, 4, 1"); b(f"v_lshrrev_b32 v{hh}, 5, v{vLANE}"); b(f"v_bfe_u32 v{r0}, v{vLANE}, 2, 2")
    b(f"v_and_b32 v{pc}, 1, v{vLANE}"); b(f"v_lshlrev_b32 v{pc}, 4, v{pc}")
    b(f"v_bfe_u32 v{vE+4}, v{vLANE}, 1, 1"); b(f"v_lshl_add_u32 v{pc}, v{vE+4}, 3, v{pc}")
    b(f"v_lshl_add_u32 v{pc}, v{mat}, 13, v{pc}")
    b(f"v_lshl_add_u32 v{hh}, v{hh}, 3, v{r0}")
    b(f"v_lshrrev_b32 v{r0}, 1, v{r0}"); b(f"v_lshl_add_u32 v{r0}, v{mat}, 1, v{r0}")
    b(f"v_lshl_add_u32 v{vE+4}, v{hh}, 7, v{pc}")
    b(f"v_lshl_add_u32 v{vE+5}, v{hh}, 6, v{pc}")
    b(f"s_lshr_b32 s{sT1}, s{sWV}, 1")
    for j in range(4):
        b(f"s_add_u32 s{sT0}, s{sWV}, {j}"); b(f"s_and_b32 s{sT0}, s{sT0}, 3")
        b(f"v_xor_b32 v{vE+6}, s{sT0}, v{r0}")
        b(f"v_lshl_add_u32 v{vE+6}, v{vE+6}, 5, v{vE+4}")
        for par in range(2):
            b(f"s_xor_b32 s{sT2}, s{sT1}, {par}"); b(f"s_lshl_b32 s{sT2}, s{sT2}, 11")
            b(f"v_add_u32 v{vWR+2*j+par}, s{sT2}, v{vE+6}")
        b(f"s_lshr_b32 s{sT2}, s{sT0}, 1"); b(f"s_lshl_b32 s{sT3}, s{sCG}, 1"); b(f"s_add_u32 s{sT2}, s{sT2}, s{sT3}")
        b(f"s_lshl_b32 s{sT2}, s{sT2}, 17"); b(f"s_and_b32 s{sT0}, s{sT0}, 1"); b(f"s_lshl_b32 s{sT0}, s{sT0}, 9")
        b(f"s_add_u32 s{sSO[j]}, s{sT2}, s{sT0}")
    for j in range(2):
        b(f"s_and_b32 s{sT0}, s{sWV}, 1"); b(f"s_xor_b32 s{sT0}, s{sT0}, {j}")
        b(f"v_xor_b32 v{vE+6}, s{sT0}, v{mat}")
        b(f"v_lshl_add_u32 v{vE+6}, v{vE+6}, 5, v{vE+5}")
        for par in range(2):
            b(f"s_xor_b32 s{sT2}, s{sT1}, {par}"); b(f"s_lshl_b32 s{sT2}, s{sT2}, 10")
            b(f"v_add_u32 v{vWR2+2*j+par}, s{sT2}, v{vE+6}")
    b(f"s_and_b32 s{sT0}, s{sWV}, 2")
    b(f"v_and_b32 v{vE}, 3, v{vLANE}"); b(f"v_xor_b32 v{vE}, s{sT0}, v{vE}"); b(f"v_lshlrev_b32 v{vE}, 4, v{vE}")
    b(f"v_lshrrev_b32 v{vE+1}, 2, v{vLANE}"); b(f"v_mul_u32_u24 v{vE+1}, 3456, v{vE+1}"); b(f"v_add_u32 v{vRP}, v{vE}, v{vE+1}")
    b(f"s_and_b32 s{sT2}, s{sWV}, 1"); b(f"s_and_b32 s{sT1}, s{sCG}, 1"); b(f"s_lshl1_add_u32 s{sT1}, s{sT1}, s{sT2}")
    b(f"s_lshl2_add_u32 s{sT1}, s{sRB}, s{sT1}"); b(f"s_sub_u32 s{sT1}, 63, s{sT1}")
    b(f"s_and_b32 s{sT0}, s{sCG}, -2"); b(f"s_min_u32 s{sT0}, s{sT0}, 8")
    b(f"s_mul_i32 s{sR0}, s{sT0}, 320"); b(f"s_mul_i32 s{sT3}, s{sT1}, {16*3456}"); b(f"s_add_u32 s{sR0}, s{sR0}, s{sT3}"); b(f"s_add_u32 s{sR0}, s{sR0}, 256")
    b(f"s_lshr_b32 s{sT3}, s{sWV}, 1")
    b(f"s_lshl1_add_u32 s{sR1}, s{sT0}, s{sT3}"); b(f"s_mul_i32 s{sR1}, s{sR1}, 40"); b(f"s_add_u32 s{sR1}, s{sR1}, s{sT1}")
    b(f"s_lshl_b32 s{sR1}, s{sR1}, 10"); b(f"s_add_u32 s{sR1}, s{sR1}, {F_W2}")
    b(f"s_add_u32 s{sT0}, s{sT0}, s{sT3}"); b(f"s_mul_i32 s{sT0}, s{sT0}, 5120"); b(f"s_add_u32 s{sT0}, s{sT0}, {F_WF}")
    b(f"s_lshl_b32 s{sR2}, s{sT1}, 7"); b(f"s_add_u32 s{sR2}, s{sR2}, s{sT0}")
    b(f"s_cmp_eq_u32 s{sCG}, 10"); b(f"s_cselect_b32 s{sT1}, 63, s{sT1}")
    b(f"s_cmp_ge_u32 s{sT1}, 40"); b(f"s_cselect_b32 s{sR0}, {OOB}, s{sR0}"); b(f"s_cselect_b32 s{sR1}, {OOB}, s{sR1}"); b(f"s_cselect_b32 s{sR2}, {OOB}, s{sR2}")
    b(f"s_lshl_b32 s{sT2}, s{sT2}, 9"); b(f"s_add_u32 s{sT0}, s{sT0}, s{sT2}")
    b(f"v_bfe_u32 v{vE}, v{vLANE}, 2, 3"); b(f"v_min_u32 v{vE}, 4, v{vE}"); b(f"v_and_b32 v{vE+1}, 3, v{vLANE}"); b(f"v_lshl_add_u32 v{vE}, v{vE}, 3, v{vE+1}")
    b(f"v_lshl_add_u32 v{vE+1}, v{vE}, 7, s{sT0}")
    b(f"v_cmp_gt_u32 vcc, 32, v{vLANE}"); b(f"v_cndmask_b32 v{vBFO}, v{vE+1}, v{vBFO}, vcc")
    b(f"s_and_b32 s{sT0}, s{sRB}, 7"); b(f"s_lshl_b32 s{sT0}, s{sT0}, 7"); b(f"v_lshl_add_u32 v{vW2P}, v{vE}, 10, s{sT0}")
    b(f"s_lshl2_add_u32 s{sR3}, s{sRB}, s{sWV}"); b(f"s_lshl_b32 s{sR3}, s{sR3}, 8"); b(f"s_add_u32 s{sR3}, s{sR3}, {F_ST}")
    b(f"s_cmp_eq_u32 s{sCG}, 0"); b(f"s_cselect_b32 s{sR3}, s{sR3}, {OOB}")
    b.srd(S_P0, P_WD, 1728 * 1280)
    b(f"s_lshl_b32 s{sT0}, s{sRB}, 2"); b(f"s_add_u32 s{sT0}, s{sT0}, s{sWV}")
    b(f"s_mul_i32 s{sT1}, s{sT0}, 205"); b(f"s_lshr_b32 s{sT1}, s{sT1}, 11")
    b(f"s_mul_i32 s{sT2}, s{sT1}, 10"); b(f"s_sub_u32 s{sT0}, s{sT0}, s{sT2}")
    b(f"s_lshl_b32 s{sT2}, s{sT1}, 6"); b(f"s_add_u32 s{sT2}, s{sT2}, s{sCOL[0]}")
    b(f"s_cmp_eq_u32 s{sT1}, 4"); b(f"s_cselect_b32 s{sT2}, s{sCOL[2]}, s{sT2}")
    b(f"s_mul_i32 s{sT2}, s{sT2}, 640")
    b(f"s_lshl_b32 s{sT3}, s{sT0}, 7"); b(f"s_add_u32 s{sT2}, s{sT2}, s{sT3}")
    b(f"s_lshl_b32 s{sT3}, s{sCG}, 1"); b(f"s_add_u32 s{sT3}, s{sT3}, s{sT1}")
    b(f"s_cmp_ge_u32 s{sT1}, 2"); b(f"s_cselect_b32 s{sQ0}, 20, 0"); b(f"s_add_u32 s{sT3}, s{sT3}, s{sQ0}")
    b(f"s_add_u32 s{sQ0}, s{sCG}, 44")
    b(f"s_cmp_eq_u32 s{sT1}, 4"); b(f"s_cselect_b32 s{sT3}, s{sQ0}, s{sT3}")
    b(f"s_lshl_b32 s{sBFO}, s{sT3}, 4"); b(f"s_add_u32 s{sBFO}, s{sBFO}, s{sT0}"); b(f"s_lshl_b32 s{sBFO}, s{sBFO}, 7"); b(f"s_add_u32 s{sBFO}, s{sBFO}, {F_BF}")
    b(f"s_mul_i32 s{sT3}, s{sT3}, {B2_STEP}"); b(f"s_lshl_b32 s{sT0}, s{sT0}, 12"); b(f"s_add_u32 s{sT3}, s{sT3}, s{sT0}")
    b(f"s_cmp_eq_u32 s{sCG}, 10"); b(f"s_addc_u32 s{sT1}, s{sT1}, 0")
    b(f"s_cmp_gt_u32 s{sT1}, 4"); b(f"s_cselect_b32 s{sQ1}, {OOB}, s{sT2}"); b(f"s_cselect_b32 s{sG}, {OOB}, s{sT3}")
    b(f"s_cselect_b32 s{sBFO}, {OOB}, s{sBFO}")
    b(f"s_lshr_b32 s{sT3}, s{sWV}, 1"); b(f"s_lshl1_add_u32 s{sT3}, s{sCG}, s{sT3}"); b(f"s_mul_i32 s{sT3}, s{sT3}, 40960")
    b(f"s_and_b32 s{sT2}, s{sWV}, 1"); b(f"s_lshl_b32 s{sT2}, s{sT2}, 12"); b(f"s_add_u32 s{sT3}, s{sT3}, s{sT2}"); b(f"s_add_u32 s{sT3}, s{sT3}, {F_W2}")
    b(f"s_cmp_eq_u32 s{sCG}, 10"); b(f"s_cselect_b32 s{sCOL[2]}, {OOB}, s{sT3}")
    vPD = 54
    b(f"v_and_b32 v{vPD}, 7, v{vLANE}"); b(f"v_lshl_add_u32 v{vPD}, v{vPD}, 4, v{vT3}")
    b(f"v_lshrrev_b32 v{vE}, 4, v{vLANE}"); b(f"v_lshlrev_b32 v{vE}, 3, v{vE}")
    b(f"v_bfe_u32 v{vE+1}, v{vLANE}, 2, 2"); b(f"v_add_u32 v{vE}, v{vE}, v{vE+1}"); b(f"v_lshlrev_b32 v{vE}, 7, v{vE}")
    b(f"v_and_b32 v{vE+1}, 3, v{vLANE}"); b(f"v_lshl_add_u32 v{vE}, v{vE+1}, 3, v{vE}")
    b(f"v_add_u32 v{vPRE}, s{sM0X}, v{vE}")
    pb = B(); pb(f"s_add_u32 m0, s{sM0X}, {XS4}")
    pre_ld = []
    for i in range(4):
        pre_ld.append(pb(f"buffer_load_dwordx4 v{vPD}, {srd(S_P0)}, s{sQ1} offen offset:{1024*i} lds"))
        if i < 3: pb(f"s_add_u32 s{sQ1}, s{sQ1}, {10240-1024}")
    for h_ in range(2): pb(f"buffer_load_dwordx4 {v(vRD[h_],4)}, v{vRP}, {srd(S_W)}, s{sR0} offen offset:{64*h_}")
    pq = B(); pq.add(W(pre_ld)); pre_st = []
    for cb in range(4):
        for hf in range(2):
            pq(f"ds_read_b64_tr_b16 {p2(vE+4*cb+2*hf)}, v{vPRE} offset:{XS4 + cb*32 + hf*512}")
    pq(f"buffer_store_dwordx4 {v(vRD[0],4)}, v{vL16}, {srd(S_F)}, s{sR1} offen sc1")
    pq(f"s_add_u32 s{sR1}, s{sR1}, 81920")
    pq(f"buffer_store_dwordx4 {v(vRD[1],4)}, v{vL16}, {srd(S_F)}, s{sR1} offen sc1")
    for cb in range(4):
        pre_st.append(pq(f"buffer_store_dwordx4 {v(vE+4*cb,4)}, v{vL16}, {srd(S_B2)}, s{sG} offen offset:{1024*cb} sc1"))
    if OPT['hx']:
        b.add(pb.l); b.add([I(i.text) if 0 else i for i in HEAD['x0w0']])
    else: tok_setup(b)
    stamp(b, 'adr', 2)
    b.add(xi[1], wi[1])

    st = Stream()
    main = []; corr_at = {}; n = 0; first_gap = {}; sb_last = {}
    accb = [vACC, vACC + 64, vACC]
    for cc, (sb, c) in enumerate(CH):
        nblk = 4 if sb < 2 else 2; nks = 4 if sb < 2 else 8
        for ks in range(nks):
            kk = c * nks + ks
            if sb >= 1 and c == 1 and ks == (1 if sb < 2 else 2):
                corr_at[sb - 1] = len(st.m)
                for j in range(4):
                    d = accb[sb - 1] + 16 * j
                    st.add(I(f"v_mfma_f32_32x32x16_bf16 {v(d,16)}, {v(vQ,4)}, {v(vXM + 4*(j%2),4)}, {v(d,16)}"))
            for j in range(nblk):
                d = accb[sb] + 16 * j; fr = vFR + 4 * (n % NF)
                g = st.add(I(f"v_mfma_f32_32x32x16_bf16 {v(d,16)}, {v(fr,4)}, {a(4*kk,4)}, {'0' if kk == 0 else v(d,16)}"))
                main.append((g, sb, cc, ks, j, kk)); n += 1
                if ks == 0 and j == 0: first_gap[cc] = len(main) - 1
                if j == 0 and (sb < 2 or ks % 2 == 0):
                    cs = vCS + 4 * (sb % 2)
                    st.add(I(f"v_mfma_f32_16x16x32_bf16 {v(cs,4)}, {v(vSEL,4)}, {v(fr,4)}, {'0' if kk == 0 else v(cs,4)}"))
                if sb == 0 and j == 1:
                    st.add(I(f"v_mfma_f32_16x16x32_bf16 {v(vSUM,4)}, {v(vSEL,4)}, {a(4*kk,4)}, {'0' if kk == 0 else v(vSUM,4)}"))
                if sb == 0 and j >= 2:
                    xr = a(4 * kk + 2 * (j - 2), 2)
                    st.add(I(f"v_mfma_f32_4x4x4_16b_bf16 {v(vSQ,4)}, {xr}, {xr}, {'0' if (kk == 0 and j == 2) else v(vSQ,4)}"))
            sb_last[sb] = len(st.m) - 1
    def wread(idx):
        g, sb, cc, ks, j, kk = main[idx]
        fr = vFR + 4 * (idx % NF); slot = (cc % NSLOT) * 16384
        if sb < 2: ad = vWR + 2 * j + (ks & 1); off = slot + (ks >> 1) * 4096; hs = 512
        else: ad = vWR2 + 2 * j + (ks & 1); off = slot + (ks >> 1) * 2048; hs = 256
        return [I(f"ds_read_b64_tr_b16 v[{fr}:{fr+1}], v{ad} offset:{off}"), I(f"ds_read_b64_tr_b16 v[{fr+2}:{fr+3}], v{ad} offset:{off+hs}")]
    xrd = {}
    def xread(kk):
        xrd[kk] = I(f"ds_read_b128 {a(4*kk,4)}, v{vXR + kk % 4} offset:{((kk // 4) % NX) * 4096}")
        return xrd[kk]
    b.add(W(xt[0], wt[0]))
    if OPT['hx']: tok_setup(b)
    b("s_barrier"); stamp(b, 'c0', 2)
    b.add(xread(0))
    for idx in range(LA): b.add(wread(idx))
    def G(cc, k):
        return main[min(max(first_gap[cc] - LA, 0) + k, len(main) - 1)][0]
    def spread(cc, k0, groups):
        for k, grp in enumerate(groups): st.pin(G(cc, k0 + k), *(grp if isinstance(grp, list) else [grp]))
    P = P2()
    P.give('a', 160, 252)
    cs_wr = {}
    bfi, bfc = poll_pair(bf_issue('ffw'), bf_check('ffw'), 'bf')
    a1i, a1c = poll_pair(af_issue(1), af_check('ffn'), 'a1')
    def pairs(l): return [l[k:k+2] for k in range(0, len(l), 2)]
    spread(0, 1, pairs(xi[2] + wi[2] + xi[3] + wi[3]))
    if OPT['pf'] and OPT['order'] == 3: st.pin(G(1, 0), *HEAD['pfb'].l)
    PRC = 6
    for idx in range(len(main)):
        g, sb, cc, ks, j, kk = main[idx]
        t = idx + LA
        if t < len(main):
            g2, sb2, cc2, ks2, j2, kk2 = main[t]
            if first_gap[cc2] == t:
                toks = list(wt[cc2])
                if sb2 == 0: toks += xt[cc2]
                if CH[cc2][1] == 1 and sb2 >= 1:
                    cs_wr[sb2 - 1] = [I(f"ds_write2st64_b32 v{vT2}, v{vT3}, v{vT3} offset0:0 offset1:4")]
                    toks += cs_wr[sb2 - 1]
                st.pin(g, W(toks), I("s_barrier"), *stamp_ins(f"c{cc2}", 2 if cc2 in (10, 20) else 1))
                nxt = []
                if cc2 + 3 < len(CH): nxt += wi[cc2 + 3]
                if sb2 == 0 and cc2 + 3 < 10:
                    nxt += [[W([xrd[4 * (cc2 - 1) + q] for q in range(4)]), xi[cc2 + 3][0]]] + xi[cc2 + 3][1:]
                spread(cc2, 2, nxt)
                if CH[cc2][1] == 1 and sb2 >= 1:
                    st.pin(main[idx + 1][0], I(f"ds_read2st64_b32 v[{vQ}:{vQ+1}], v{vT2} offset0:0 offset1:1"),
                           I(f"ds_read2st64_b32 v[{vQ+2}:{vQ+3}], v{vT2} offset0:2 offset1:3"))
                if cc2 == PRC and not OPT['hx']:
                    if OPT['pf']: st.pin(G(PRC, 14), pf_ins(vPW, S_W, f"s{sCOL[1]}"))
                    st.pin(G(PRC, 15), *pb.l)
                if cc2 == (5 if OPT['hx'] else 12): st.pin(G(cc2, 15), W(pre_st), *bf_store(vT0), I(f"buffer_store_dword v{vT0}, off, {srd(S_F)}, s{sR2} sc1"))
                if cc2 == 14: st.pin(G(14, 11), *bfi)
                if cc2 == 15:
                    st.pin(G(15, 12), *bfc)
                    st.pin(G(15, 13), I("s_mov_b32 exec_lo, 0"), pf_ins(vW2P, S_F, f"s{sCOL[2]}", " sc1"), I("s_mov_b32 exec_lo, -1"))
                    st.pin(G(15, 14), *b_pf(0))
                if 17 <= cc2 <= 20: spread(cc2, 10, P.bdma(cc2 - 17))
                if cc2 == 21: st.pin(G(21, 10), *a1i)
                if cc2 == 22: st.pin(G(22, 6), *a1c); st.pin(G(22, 7), *a_pf(0, 11))
                if cc2 >= 23: spread(cc2, 5 if cc2 == 23 else 2, [P.ld() for _ in range(11)])
            if sb2 == 0 and j2 == 0: st.pin(g, xread(kk2))
            st.pin(g, *wread(t))
    if OPT['hx']: st.queue(pq.l, G(1, 14), G(3, 0), name='pre')
    else: st.queue(pq.l, G(9, 2), G(10, 0), name='pre')
    def trow(bb, t): bb(f"v_and_b32 v{t}, 31, v{vLANE}")
    store_toks = {0: [], 1: [], 2: []}
    for sb in range(2):
        q = B()
        q(f"s_lshl_b32 s{sT2}, s{sWV}, 8"); q(f"s_add_u32 s{sT2}, s{sT2}, {CSX}")
        q(f"v_lshl_add_u32 v{vT2}, v{vLANE}, 2, s{sT2}")
        cs_pack(q, vT3, vCS + 4 * (sb % 2), vT1)
        q.add(cs_wr[sb])
        bar_gap = main[first_gap[10 * (sb + 1) + 1] - LA][0]
        st.queue(q.l, sb_last[sb] + 2, bar_gap - 1, name=f"cs{sb}")
        q = B()
        if sb == 0:
            q.add(stats_final(trow, vE, True))
            q(f"v_mul_f32 v{vK1}, {f32(GK1)}, v{vE+1}")
            q(f"v_mul_f32 v{vK2}, v{vE+1}, v{vE+1}"); q(f"v_mul_f32 v{vK2}, v{vK2}, v{vE+1}"); q(f"v_mul_f32 v{vK2}, {f32(GK2)}, v{vK2}")
            q(f"v_mul_f32 v{vKC}, v{vE+2}, v{vE+2}")
            q(f"v_mov_b32 v{vSUM}, v{vE+3}")
        for k in range(8): q(f"v_mov_b32 v{vXM+k}, {'v%d' % vSUM if k in (0, 5) else 0}")
        st.queue(q.l, sb_last[sb] + 2, corr_at[sb] - 1, name=f"st{sb}")
        ca = corr_at[sb]
        st.pin(ca + 0, I(f"v_mov_b32 v{vXM}, 0"), I(f"v_mov_b32 v{vXM+2}, v{vSUM}"))
        st.pin(ca + 1, I(f"v_mov_b32 v{vXM+5}, 0"), I(f"v_mov_b32 v{vXM+7}, v{vSUM}"))
        q = B()
        for j in range(4):
            if sb == 1: q(f"s_add_u32 s{sSO[j]}, s{sSO[j]}, {22*A2_STEP}")
            l, tok = ffn_epilogue(accb[sb] + 16 * j, sSO[j], vE + 10 * (j % 2))
            q.add(l); store_toks[sb].append(tok)
        dl = G(18, 0) if sb == 0 else sb_last[2]
        st.queue(q.l, ca + 4, dl, name=f"ep{sb}")
        if sb == 0: st.pin(G(19, 8), W(store_toks[0]), *flag_store(1, vT0))
    b.add(st.schedule(lambda g, mf: mf.passes * 4 - 8 - (2 if mf.passes == 8 else 0)))
    print("FFN stream: gaps", len(st.m), "overflow cycles", st.over, {q['name']: q['done_gap'] for q in st.queues}, sb_last, file=sys.stderr)
    stamp(b, 'm1', 2)
    P.give('a', 0, 160)
    bsi, bsc = poll_pair(bf_issue('all'), bf_check('all'), 'bs')
    b.add(bsi)
    cs_pack(b, vT3, vCS, vT1)
    b(f"ds_write2st64_b32 v{vT2}, v{vT3}, v{vT3} offset0:0 offset1:4")
    for k in range(8): b(f"v_mov_b32 v{vXM+k}, {'v%d' % vSUM if k in (0, 2, 5, 7) else 0}")
    b.add(W(P.btok[3]))
    b("s_waitcnt lgkmcnt(0)"); b("s_barrier"); stamp(b, 'tb', 3)
    b(f"ds_read2st64_b32 v[{vQ}:{vQ+1}], v{vT2} offset0:0 offset1:1")
    b(f"ds_read2st64_b32 v[{vQ+2}:{vQ+3}], v{vT2} offset0:2 offset1:3")
    b(f"s_add_u32 s{sT0}, s{sCG}, 44"); b(f"s_lshl_b32 s{sT0}, s{sT0}, 17")
    b(f"s_cmp_eq_u32 s{sCG}, 10"); b(f"s_cselect_b32 s{sT0}, {OOB}, s{sT0}")
    b(f"s_and_b32 s{sT1}, s{sWV}, 1"); b(f"s_lshl_b32 s{sT1}, s{sT1}, 9")
    b(f"s_add_u32 s{sSO[0]}, s{sT0}, s{sT1}"); b(f"s_xor_b32 s{sSO[1]}, s{sSO[0]}, 512")
    for j in range(2):
        d = accb[2] + 16 * j
        b(f"v_mfma_f32_32x32x16_bf16 {v(d,16)}, {v(vQ,4)}, {v(vXM+4*j,4)}, {v(d,16)}")
    for j in range(2):
        l, tok = ffn_epilogue(accb[2] + 16 * j, sSO[j], vE + 10 * j)
        store_toks[2].append(tok)
        b.add(interleave(l, P.bdma(4 + j), 12))
        if j == 0: b.add(stamp_ins('f2a', 3), W(store_toks[1]), flag_store(2, vT0), stamp_ins('f2', 3))
    b.add(bsc, b_pf(1))
    for grp in P.bdma(6): b.add(grp)
    stamp(b, 'ep2', 2)
    a2i, a2c = poll_pair(af_issue(2), af_check('ffn'), 'a2')
    a3i, a3c = poll_pair(af_issue(3), af_check('ffn'), 'a3')
    asi, asc = poll_pair(af_issue(3), af_check('all'), 'as')
    PD = 40
    pd = OPT['pd'] if OPT['apf'] else 0
    plan = [('at', a2i, 10 * OPT['c2'] - PD), ('at', a2c + a_pf(11, 11), 10 * OPT['c2']), ('at', [], 10 * OPT['c2'] + pd), ('A', 22),
            ('at', a3i, 10 * OPT['c3'] - PD), ('at', a3c + a_pf(22, 5), 10 * OPT['c3']),
            ('at', asi, 10 * OPT['cs'] - PD), ('at', asc + a_pf(27, 20), 10 * OPT['cs']), ('A', 10), ('at', [], 10 * OPT['cs'] + pd), ('A', 40)]
    phase2(b, P, plan, [0, 1, 2, 3], extra_pins=[(45, stamp_ins('f3a', 3) + [W(store_toks[2])] + flag_store(3, vT0) + stamp_ins('f3', 3))])
    return b

def cmul(b, dr, di, ar, ai, br, bi):
    b(f"v_mul_f32 v{dr}, v{ar}, v{br}"); b(f"v_mul_f32 v{di}, v{ar}, v{bi}")
    b(f"v_fma_f32 v{dr}, -v{ai}, v{bi}, v{dr}"); b(f"v_fma_f32 v{di}, v{ai}, v{br}, v{di}")
def cfma(b, dr, di, ar, ai, br, bi, cr, ci):
    b(f"v_fma_f32 v{dr}, v{ar}, v{br}, v{cr}"); b(f"v_fma_f32 v{di}, v{ar}, v{bi}, v{ci}")
    b(f"v_fma_f32 v{dr}, -v{ai}, v{bi}, v{dr}"); b(f"v_fma_f32 v{di}, v{ai}, v{br}, v{di}")
BA = "op_sel:[0,0,0] op_sel_hi:[0,1,1]"
BB = "op_sel:[1,0,0] op_sel_hi:[1,1,1]"
NEG = " neg_lo:[1,0,0] neg_hi:[1,0,0]"
SW = "op_sel:[1,1,0] op_sel_hi:[1,0,1] neg_lo:[1,0,0]"
def pcfma(b, d, L, x, c):
    b(f"v_pk_fma_f32 {p2(d)}, {p2(L)}, {p2(x)}, {p2(c)} {BA}")
    b(f"v_pk_fma_f32 {p2(d)}, {p2(L)}, {p2(x)}, {p2(d)} {SW}")

def ssm_path():
    b = B()
    b("L_ssm:")
    xi, xt, wi, wt = {}, {0: HEAD['xt0']}, {}, {0: HEAD['wt0']}
    for c in range(1, 10): xi[c], xt[c] = x_dma(c)
    CH = [(sb, c) for sb in range(2) for c in range(10)]
    for cc, (sb, c) in enumerate(CH):
        if cc: wi[cc], wt[cc] = w_dma(cc, vWD, 128, sCOL[sb] if c == 0 else None)
    CR = 192; PR = 216
    AD = 120
    b(f"s_lshl_b32 s{sT0}, s{sG}, 2"); b(f"s_add_u32 s{sT3}, s{sT0}, s{sWV}"); b(f"s_lshl_b32 s{sT0}, s{sT3}, 6")
    b(f"v_and_b32 v{vE}, 31, v{vLANE}"); b(f"v_lshl_add_u32 v{vE+1}, v{vE}, 1, s{sT0}")
    b(f"global_load_ushort v{PR}, v{vE+1}, s[{P_LRE}:{P_LRE+1}]")
    b(f"global_load_ushort v{PR+1}, v{vE+1}, s[{P_LIM}:{P_LIM+1}]")
    b(f"global_load_ushort v{PR+2}, v{vE+1}, s[{P_LDT}:{P_LDT+1}]")
    b.srd(S_P0, P_CRE, 640 * 1280); b.srd(S_P1, P_CIM, 640 * 1280)
    b(f"v_lshrrev_b32 v{AD}, 2, v{vLANE}"); b(f"v_mul_u32_u24 v{AD}, 1280, v{AD}")
    b(f"v_and_b32 v{vE+3}, 3, v{vLANE}"); b(f"v_lshl_add_u32 v127, v{vE+3}, 4, v{AD}")
    b(f"s_and_b32 s{sT1}, s{sRB}, 7"); b(f"s_lshr_b32 s{sT2}, s{sRB}, 3")
    b(f"s_lshl_b32 s{sBFO}, s{sT1}, 1"); b(f"s_add_u32 s{sBFO}, s{sBFO}, s{sT2}")
    b(f"s_mul_i32 s{sT1}, s{sT1}, 5"); b(f"s_mul_i32 s{sT2}, s{sT2}, 3"); b(f"s_add_u32 s{sT2}, s{sT1}, s{sT2}")
    b(f"s_mul_i32 s{sQ1}, s{sT2}, 20480"); b(f"s_add_u32 s{sQ1}, s{sQ1}, s{sT0}")
    cl = B()
    for q in range(3):
        cl(f"buffer_load_dwordx4 {v(CR+8*q,4)}, v127, {srd(S_P0)}, s{sQ1} offen")
        cl(f"buffer_load_dwordx4 {v(CR+8*q+4,4)}, v127, {srd(S_P1)}, s{sQ1} offen")
        if q < 2: cl(f"s_add_u32 s{sQ1}, s{sQ1}, 20480")
    b(f"s_lshl_b32 s{sT1}, s{sT3}, 13"); b(f"s_add_u32 s{sT1}, s{sT1}, {WS_FLG + F_E}")
    b(f"s_add_u32 s{S_E}, s{P_WS}, s{sT1}"); b(f"s_addc_u32 s{S_E+1}, s{P_WS+1}, 0"); b(f"s_and_b32 s{S_E+1}, s{S_E+1}, 0xffff")
    b(f"s_mov_b32 s{S_E+2}, 8192"); b(f"s_mov_b32 s{S_E+3}, 0x20000")
    b(f"s_sub_u32 s{sSO[3]}, 15, s{sRB}"); b(f"s_lshl_b32 s{sSO[3]}, s{sSO[3]}, 9")
    b(f"s_lshl_b32 s{sT3}, s{sT3}, 1"); b(f"s_add_u32 s{sT3}, s{sT3}, 54")
    b(f"s_mul_i32 s{sSO[2]}, s{sT3}, {B2_STEP}"); b(f"s_lshl_b32 s{sT1}, s{sT2}, 10"); b(f"s_add_u32 s{sSO[2]}, s{sSO[2]}, s{sT1}")
    b(f"s_lshl_b32 s{sT3}, s{sT3}, 4"); b(f"s_add_u32 s{sBFO}, s{sBFO}, s{sT3}"); b(f"s_lshl_b32 s{sBFO}, s{sBFO}, 7"); b(f"s_add_u32 s{sBFO}, s{sBFO}, {F_BF}")
    b(f"s_lshl_b32 s{sSO[0]}, s{sG}, 3"); b(f"s_add_u32 s{sSO[0]}, s{sSO[0]}, 54"); b(f"s_lshl_b32 s{sSO[0]}, s{sSO[0]}, 17")
    b(f"s_add_u32 s{sPW}, s{sPW}, {64*1280}")
    b(f"s_mov_b32 s{sT0}, s{sWV}")
    frag_addr_setup(b)
    for k in range(4):
        b(f"v_mov_b32 v{vWR+k}, v{vXR+k}"); b(f"v_add_u32 v{vXR+k}, s{sM0X}, v{vXR+k}")
    if OPT['hx']:
        b(f"v_mul_u32_u24 v{vE}, 1280, v{vLANE}")
        b(f"s_bitcmp1_b32 s{sWV}, 0")
        b(f"s_cselect_b32 s{sT0}, {OOB}, s{sQ1}"); b(f"s_cselect_b32 s{sT1}, s{sQ1}, {OOB}")
        b("s_bfm_b64 exec, 48, 0"); b.add(pf_ins(vE, S_P0, f"s{sT0}"), pf_ins(vE, S_P1, f"s{sT1}")); b("s_mov_b64 exec, -1")
        x0s = [I(i.text) for i in HEAD['x0w0']]
        xt[0] = [i for i in x0s if i.kind == 'vmem']; wt[0] = []
        b.add(x0s)
    else: tok_setup(b)
    stamp(b, 'adr', 2)
    b.add(xi[1], wi[1])
    q = B()
    lr, li, dt, zr, zi, mg = PR, PR + 1, PR + 2, PR + 3, PR + 4, PR + 5
    TA = PR + 6; TB = PR + 8; CF = PR + 10; L1 = PR + 12; LQ = PR + 16
    LOG2E = math.log2(math.e)
    for r in (lr, li, dt): q(f"v_lshlrev_b32 v{r}, 16, v{r}")
    q(f"v_mul_f32 v{dt}, {f32(LOG2E)}, v{dt}"); q(f"v_exp_f32 v{dt}, v{dt}"); bf16_round(q, dt, dt)
    q(f"v_mul_f32 v{zr}, v{dt}, v{lr}"); q(f"v_mul_f32 v{zi}, v{dt}, v{li}")
    q(f"v_mul_f32 v{zr}, {f32(LOG2E)}, v{zr}"); q(f"v_exp_f32 v{mg}, v{zr}")
    q(f"v_mul_f32 v{zi}, 0.15915494, v{zi}")
    q(f"v_rndne_f32 v{zr}, v{zi}"); q(f"v_sub_f32 v{zi}, v{zi}, v{zr}")
    q(f"v_cos_f32 v{L1}, v{zi}"); q(f"v_sin_f32 v{L1+1}, v{zi}")
    q(f"v_mul_f32 v{L1}, v{L1}, v{mg}"); q(f"v_mul_f32 v{L1+1}, v{L1+1}, v{mg}")
    q(f"v_mul_f32 v{zr}, v{lr}, v{lr}"); q(f"v_fma_f32 v{zr}, v{li}, v{li}, v{zr}"); q(f"v_rcp_f32 v{zr}, v{zr}")
    q(f"v_add_f32 v{zi}, -1.0, v{L1}")
    q(f"v_add_f32 v{zr}, v{zr}, v{zr}")
    q(f"v_mul_f32 v{CF}, v{zi}, v{lr}"); q(f"v_fma_f32 v{CF}, v{L1+1}, v{li}, v{CF}")
    q(f"v_mul_f32 v{CF+1}, v{L1+1}, v{lr}"); q(f"v_fma_f32 v{CF+1}, -v{zi}, v{li}, v{CF+1}")
    q(f"v_mul_f32 v{CF}, v{CF}, v{zr}"); q(f"v_mul_f32 v{CF+1}, v{CF+1}, v{zr}")
    def csq(d, s): cmul(q, d, d + 1, s, s + 1, s, s + 1)
    csq(TA, L1); csq(TB, TA); csq(L1 + 2, TB); csq(LQ + 2, L1 + 2)
    q(f"v_mov_b32 v{LQ}, 1.0"); q(f"v_mov_b32 v{LQ+1}, 0")
    def lq(k, x, y): cmul(q, LQ + 2*k, LQ + 2*k + 1, LQ + 2*x, LQ + 2*x + 1, LQ + 2*y, LQ + 2*y + 1)
    lq(2, 1, 1); lq(3, 2, 1); lq(4, 2, 2); lq(5, 4, 1); lq(6, 4, 2); lq(7, 4, 3); lq(8, 4, 4)
    q(f"v_and_b32 v{AD+2}, 31, v{vLANE}"); q(f"s_lshl_b32 s{sT0}, s{sWV}, 5"); q(f"v_add_u32 v{AD}, s{sT0}, v{AD+2}")
    q(f"v_lshlrev_b32 v{AD+1}, 4, v{AD}"); q(f"v_add_u32 v{AD+1}, {PL}, v{AD+1}")
    q(f"v_lshlrev_b32 v{AD+3}, 6, v{AD}"); q(f"v_add_u32 v{AD+3}, {PA}, v{AD+3}")
    q(f"v_lshlrev_b32 v{AD}, 3, v{AD}"); q(f"v_add_u32 v{AD}, {PH}, v{AD}")
    q(f"v_lshl_add_u32 v{AD+2}, v{AD+2}, 3, s{sM0X}")
    q(f"ds_write_b64 v{AD+2}, {p2(CF)} offset:{XS4}")
    q(f"ds_write_b128 v{AD+1}, {v(L1,4)}"); q(f"ds_write_b64 v{AD}, {p2(LQ+16)}")
    for k in range(4): q(f"ds_write_b128 v{AD+3}, {v(LQ+4*k,4)} offset:{16*k}")
    q(f"v_and_b32 v{AD}, 3, v{vLANE}"); q(f"v_lshlrev_b32 v{AD+1}, 6, v{AD}")
    q(f"v_add_u32 v{AD+1}, s{sM0X}, v{AD+1}")
    CO = LQ
    for k in range(4): q(f"ds_read_b128 {v(CO+4*k,4)}, v{AD+1} offset:{XS4 + 16*k}")
    q(f"v_lshlrev_b32 v{AD}, 4, v{AD}")
    q(f"v_lshrrev_b32 v{AD+1}, 2, v{vLANE}"); q(f"v_add_u32 v{AD}, v{AD}, v{AD+1}"); q(f"v_lshlrev_b32 v{AD}, 4, v{AD}")
    q(f"v_add_u32 v{AD}, s{sM0X}, v{AD}"); q(f"v_add_u32 v{AD+1}, s{sM0X}, v{vL16}")
    qp = q; q = B()
    U = PR; OR_ = 104; RB_ = 112
    pre_st = []
    pend = []
    for k3 in range(3):
        for d in range(4):
            q(f"v_lshlrev_b32 v{U}, 16, v{CR+8*k3+d}"); q(f"v_lshlrev_b32 v{U+1}, 16, v{CR+8*k3+4+d}")
            q(f"v_and_b32 v{U+2}, 0xffff0000, v{CR+8*k3+d}"); q(f"v_and_b32 v{U+3}, 0xffff0000, v{CR+8*k3+4+d}")
            for e in range(2):
                ca, cb_ = CO + 4 * d + 2 * e, CO + 4 * d + 2 * e + 1
                cr, ci = U + 2 * e, U + 2 * e + 1
                q(f"v_mul_f32 v{U+4+e}, v{cr}, v{ca}"); q(f"v_fma_f32 v{U+4+e}, -v{ci}, v{cb_}, v{U+4+e}")
                q(f"v_mul_f32 v{U+6+e}, v{cr}, v{cb_}"); q(f"v_fma_f32 v{U+6+e}, v{ci}, v{ca}, v{U+6+e}")
            q(f"v_cvt_pk_bf16_f32 v{OR_+d}, v{U+4}, v{U+5}")
            q(f"v_cvt_pk_bf16_f32 v{OR_+4+d}, -v{U+6}, -v{U+7}")
            if d == 1: q.add(pend); pend = []
        so = XS4 + 2048
        q(f"ds_write_b128 v{AD}, {v(OR_,4)} offset:{so}"); q(f"ds_write_b128 v{AD}, {v(OR_+4,4)} offset:{so+1024}")
        q(f"ds_read_b128 {v(RB_,4)}, v{AD+1} offset:{so}"); q(f"ds_read_b128 {v(RB_+4,4)}, v{AD+1} offset:{so+1024}")
        s_ = B()
        if k3 == 2:
            s_(f"s_cmp_ge_u32 s{sRB}, 8"); s_(f"s_cselect_b32 s{sSO[2]}, {OOB}, s{sSO[2]}")
        s_(f"s_add_u32 s{sT1}, s{sSO[2]}, {B2_STEP}")
        pre_st.append(s_(f"buffer_store_dwordx4 {v(RB_,4)}, v{vL16}, {srd(S_B2)}, s{sSO[2]} offen sc1"))
        pre_st.append(s_(f"buffer_store_dwordx4 {v(RB_+4,4)}, v{vL16}, {srd(S_B2)}, s{sT1} offen sc1"))
        if k3 < 2: s_(f"s_add_u32 s{sSO[2]}, s{sSO[2]}, 1024")
        pend = [s_.l]
        pend = s_.l
    qc = q; qlast = pend

    st = Stream(); main = []; first_gap = {}; sb_last = {}; corr_at = {}
    accb = [vACC, vACC + 64]
    QG = [26, 30, 96, 100]
    vCS2 = [44, 104]
    n = 0
    for cc, (sb, c) in enumerate(CH):
        for ks in range(4):
            kk = c * 4 + ks
            if sb == 1 and c == 1 and ks == 2:
                corr_at[0] = len(st.m)
                for j in range(4):
                    d = accb[0] + 16 * j
                    st.add(I(f"v_mfma_f32_32x32x16_bf16 {v(d,16)}, {v(vXM,4)}, {v(QG[j],4)}, {v(d,16)}"))
            for j in range(4):
                d = accb[sb] + 16 * j; fr = vFR + 4 * (n % NF)
                g = st.add(I(f"v_mfma_f32_32x32x16_bf16 {v(d,16)}, {a(4*kk,4)}, {v(fr,4)}, {'0' if kk == 0 else v(d,16)}"))
                main.append((g, sb, cc, ks, j, kk)); n += 1
                if ks == 0 and j == 0: first_gap[cc] = len(main) - 1
                if ks == 0:
                    cs = vCS2[sb] + 4 * j
                    st.add(I(f"v_mfma_f32_16x16x32_bf16 {v(cs,4)}, {v(vSEL,4)}, {v(fr,4)}, {'0' if kk == 0 else v(cs,4)}"))
                if sb == 0 and j == 1:
                    st.add(I(f"v_mfma_f32_16x16x32_bf16 {v(vSUM,4)}, {v(vSEL,4)}, {a(4*kk,4)}, {'0' if kk == 0 else v(vSUM,4)}"))
                if sb == 0 and j >= 2:
                    xr = a(4 * kk + 2 * (j - 2), 2)
                    st.add(I(f"v_mfma_f32_4x4x4_16b_bf16 {v(vSQ,4)}, {xr}, {xr}, {'0' if (kk == 0 and j == 2) else v(vSQ,4)}"))
            sb_last[sb] = len(st.m) - 1
    def wread(idx):
        g, sb, cc, ks, j, kk = main[idx]
        fr = vFR + 4 * (idx % NF)
        return [I(f"ds_read_b128 {v(fr,4)}, v{vWR+ks} offset:{(cc % NSLOT) * 16384 + j * 4096}")]
    xrd = {}
    def xread(kk):
        xrd[kk] = I(f"ds_read_b128 {a(4*kk,4)}, v{vXR + kk % 4} offset:{((kk // 4) % NX) * 4096}")
        return xrd[kk]
    vPW2 = 22
    b(f"v_mov_b32 v{vPW2}, v{vPW}")
    b.add(W(xt[0], wt[0]))
    if OPT['hx']: tok_setup(b)
    b("s_barrier"); stamp(b, 'c0', 2)
    b.add(xread(0))
    for idx in range(LA): b.add(wread(idx))
    def G(cc, k): return main[min(max(first_gap[cc] - LA, 0) + k, len(main) - 1)][0]
    def spread(cc, k0, groups):
        for k, grp in enumerate(groups): st.pin(G(cc, k0 + k), *(grp if isinstance(grp, list) else [grp]))
    def cs_write(bb, sb):
        toks = []
        for j in range(4):
            cs_pack(bb, vT3, vCS2[sb] + 4 * j, vT1)
            toks.append(bb(f"ds_write_b32 v{vT2}, v{vT3} offset:{1024*j}"))
        return toks
    q0 = B()
    q0(f"s_lshl_b32 s{sT2}, s{sWV}, 2"); q0(f"s_add_u32 s{sT2}, s{sT2}, {CSX}")
    q0(f"v_add_u32 v{vT2}, s{sT2}, v{vL16}")
    q0(f"v_add_u32 v{vK1}, {CSX}, v{vL16}")
    csw0 = cs_write(q0, 0)
    P = P2(); P.give('a', 160, 252)
    bfi, bfc = poll_pair(bf_issue('ffn'), bf_check('ffn'), 'bf')
    def pairs(l): return [l[k:k+2] for k in range(0, len(l), 2)]
    spread(0, 1, pairs(xi[2] + wi[2] + xi[3] + wi[3]))
    if OPT['pf'] and OPT['order'] == 3: st.pin(G(1, 0), *[I(i.text) for i in HEAD['pfb'].l])
    for idx in range(len(main)):
        g, sb, cc, ks, j, kk = main[idx]
        t = idx + LA
        if t < len(main):
            g2, sb2, cc2, ks2, j2, kk2 = main[t]
            if first_gap[cc2] == t:
                toks = list(wt[cc2])
                if sb2 == 0: toks += xt[cc2]
                if cc2 == 11: toks += csw0
                st.pin(g, W(toks), I("s_barrier"), *stamp_ins(f"c{cc2}", 2 if cc2 == 10 else 1))
                nxt = []
                if cc2 + 3 < len(CH): nxt += wi[cc2 + 3]
                if sb2 == 0 and cc2 + 3 < 10:
                    nxt += [[W([xrd[4 * (cc2 - 1) + q] for q in range(4)]), xi[cc2 + 3][0]]] + xi[cc2 + 3][1:]
                spread(cc2, 2, nxt)
                if cc2 == 11:
                    for jj in range(4):
                        st.pin(main[idx + 1 + jj][0], I(f"ds_read_b128 {v(QG[jj],4)}, v{vK1} offset:{1024*jj}"))
                if cc2 == 3 and not OPT['hx']:
                    if OPT['pf']: st.pin(G(3, 14), pf_ins(vPW2, S_W, f"s{sPW}"))
                    st.pin(G(3, 15), *cl.l)
                if cc2 == 6 and OPT['hx']: st.pin(G(6, 15), *cl.l[:3]); st.pin(G(7, 8), *cl.l[3:6]); st.pin(G(7, 14), *cl.l[6:])
                if cc2 == 9: st.pin(G(9, 15), *qlast)
                if cc2 == 12: st.pin(G(12, 10), W(pre_st), *bf_store(vT0), *flag_store(1, vT0))
                if cc2 == 15: st.pin(G(15, 11), *bfi)
                if cc2 == 16: st.pin(G(16, 12), *bfc, *b_pf(0))
                if cc2 in (18, 19): spread(cc2, 2, P.bdma(2 * (cc2 - 18)) + P.bdma(2 * (cc2 - 18) + 1))
            if sb2 == 0 and j2 == 0: st.pin(g, xread(kk2))
            st.pin(g, *wread(t))
    st.queue(qp.l, G(4, 0), G(6, 4), name='par')
    st.queue(qc.l, G(7, 15) if OPT['hx'] else G(6, 5), G(9, 13), name='cpr')
    bar_gap = main[first_gap[11] - LA][0]
    st.queue(q0.l, sb_last[0] - 12, bar_gap - 1, name="cs0")
    def trow(bb, t):
        bb(f"v_bfe_u32 v{t}, v{vLANE}, 2, 1"); bb(f"v_lshlrev_b32 v{t}, 4, v{t}")
        bb(f"v_and_b32 v{t+1}, 1, v{vLANE}"); bb(f"v_lshl_add_u32 v{t}, v{t+1}, 3, v{t}")
        bb(f"v_bfe_u32 v{t+1}, v{vLANE}, 3, 2"); bb(f"v_lshl_add_u32 v{t}, v{t+1}, 1, v{t}")
        bb(f"v_bfe_u32 v{t+1}, v{vLANE}, 1, 1"); bb(f"v_add_u32 v{t}, v{t}, v{t+1}")
    q = B()
    SE_ = 10
    E = 8
    q.add(stats_final(trow, E))
    for k in range(4): q(f"v_mov_b32 v{vXM+k}, v{E+3}")
    st.queue(q.l, sb_last[0] + 2, G(11, 0), name="st0")
    b.add(st.schedule(lambda g, mf: mf.passes * 4 - 8 - (2 if mf.passes == 8 else 0)))
    print("SSM stream: gaps", len(st.m), "overflow cycles", st.over, {q['name']: q['done_gap'] for q in st.queues}, sb_last, file=sys.stderr)
    stamp(b, 'm1', 2)
    P.give('a', 0, 160)
    bsi, bsc = poll_pair(bf_issue('all'), bf_check('all'), 'bs')
    b.add(bsi)
    cs_write(b, 1)
    RS = 44
    b(f"v_lshrrev_b32 v{vT0}, 5, v{vLANE}"); b(f"s_lshl_b32 s{sT0}, s{sWV}, 8"); b(f"s_add_u32 s{sT0}, s{sT0}, {STAT}")
    b(f"v_lshl_add_u32 v{vT0}, v{vT0}, 7, s{sT0}")
    for k in range(8): b(f"ds_read2_b32 {p2(RS+2*k)}, v{vT0} offset0:{2*k+1} offset1:{2*k+17}")
    for k in range(4): b(f"v_mov_b32 v{60+k}, 0")
    b(f"s_lshl_b32 s{sT0}, s{sWV}, 10"); b(f"s_add_u32 s{sT0}, s{sT0}, {SCX - 4096}")
    b(f"v_add_u32 v{vT3}, s{sT0}, v{vL16}")
    b(f"v_and_b32 v{vT0}, 19, v{vLANE}")
    b(f"v_bfe_u32 v{vT1}, v{vLANE}, 2, 1"); b(f"v_lshl_add_u32 v{vT0}, v{vT1}, 3, v{vT0}")
    b(f"v_bfe_u32 v{vT1}, v{vLANE}, 3, 1"); b(f"v_lshl_add_u32 v{vT0}, v{vT1}, 2, v{vT0}")
    b(f"v_lshlrev_b32 v{vT1}, 4, v{vT0}"); b(f"v_add_u32 v{vT1}, {PL}, v{vT1}")
    b(f"v_lshlrev_b32 v{vT2}, 6, v{vT0}"); b(f"v_add_u32 v{vT2}, {PA}, v{vT2}")
    LB = 64; L8 = 72; LM = 6; AT = 22; EO = 22; LO32 = 30; LO128 = 32; L256 = 86
    b("s_waitcnt lgkmcnt(0)"); b("s_barrier")
    for jj in range(4): b(f"ds_read_b128 {v(QG[jj],4)}, v{vK1} offset:{1024*jj}")
    b(f"ds_read2_b64 {v(LB,4)}, v{vT1} offset0:0 offset1:64"); b(f"ds_read2_b64 {v(LB+4,4)}, v{vT1} offset0:128 offset1:192")
    b(f"ds_write_b128 v{vT3}, v[60:63]")
    b(f"ds_read2_b64 {v(L8,4)}, v{vT1} offset0:1 offset1:65"); b(f"ds_read2_b64 {v(L8+4,4)}, v{vT1} offset0:129 offset1:193")
    for cb in range(4):
        b(f"v_add_u32 v{vT3}, {2048*cb}, v{vT2}")
        b(f"ds_read2_b64 {v(LM+4*cb,4)}, v{vT3} offset0:1 offset1:2")
    RE = lambda cb: accb[cb // 2] + 16 * (cb % 2)
    IM = lambda cb: accb[cb // 2] + 32 + 16 * (cb % 2)
    for j in range(4):
        d = accb[1] + 16 * j
        b(f"v_mfma_f32_32x32x16_bf16 {v(d,16)}, {v(vXM,4)}, {v(QG[j],4)}, {v(d,16)}")
    b(f"s_lshl_b32 s{sT0}, s{sWV}, 11"); b(f"v_add_u32 v{vT3}, s{sT0}, v{vT2}")
    b(f"s_lshl_b32 s{sT0}, s{sWV}, 8"); b(f"s_add_u32 s{sT0}, s{sT0}, {PH}"); b(f"v_lshl_add_u32 v{vT0}, v{vT0}, 3, s{sT0}")
    b(f"s_lshl_b32 s{sT0}, s{sWV}, 4"); b(f"v_lshrrev_b32 v{vT1}, 5, v{vLANE}")
    b(f"v_lshl_add_u32 v{vT2}, v{vT1}, 3, v{vT2}"); b(f"v_add_u32 v{vT2}, s{sT0}, v{vT2}")
    t1 = B()
    for blk in range(8):
        for j in range(8):
            r = vACC + 16 * blk + 2 * j
            t1(f"v_pk_mul_f32 {p2(r)}, {p2(r)}, {p2(RS+2*j)}")
    t1(f"ds_read_b64 {p2(LO32)}, v{vT3} offset:16"); t1(f"ds_read_b64 {p2(LO128)}, v{vT0}")
    H = 92
    for j in range(1, 8):
        for ph in range(2):
            for cb in range(4):
                L = LB + 2 * cb
                if j == 1: pr, pi = RE(cb), IM(cb)
                else: pr, pi = H + 8 * cb + 4 * (j % 2), H + 8 * cb + 4 * (j % 2) + 2
                nr = H + 8 * cb + 4 * ((j + 1) % 2); ni = nr + 2
                if ph == 0:
                    t1(f"v_pk_fma_f32 {p2(nr)}, {p2(L)}, {p2(pr)}, {p2(RE(cb)+2*j)} {BA}")
                    t1(f"v_pk_fma_f32 {p2(ni)}, {p2(L)}, {p2(pi)}, {p2(IM(cb)+2*j)} {BA}")
                else:
                    t1(f"v_pk_fma_f32 {p2(nr)}, {p2(L)}, {p2(pi)}, {p2(nr)} {BB}{NEG}")
                    t1(f"v_pk_fma_f32 {p2(ni)}, {p2(L)}, {p2(pr)}, {p2(ni)} {BB}")
    b.add(interleave(t1.l, P.bdma(4) + P.bdma(5), 8))
    b.add(bsc, b_pf(1))
    E32 = 44
    for cb in range(4):
        h = H + 8 * cb; L = L8 + 2 * cb
        cfma(b, h + 4, h + 5, L, L + 1, h, h + 2, h + 1, h + 3)
    for cb in range(4):
        h = H + 8 * cb
        b(f"v_mov_b32 v{h+6}, v{h+4}"); b(f"v_mov_b32 v{h+7}, v{h+5}")
    for cb in range(4):
        h = H + 8 * cb
        b(f"v_permlane32_swap_b32 v{h+4}, v{h+6}"); b(f"v_permlane32_swap_b32 v{h+5}, v{h+7}")
    for cb in range(4):
        h = H + 8 * cb; M = LM + 4 * cb
        b(f"v_pk_fma_f32 {p2(E32+2*cb)}, {p2(M)}, {p2(h+4)}, {p2(h+6)} {BA}")
    for cb in range(4):
        h = H + 8 * cb; M = LM + 4 * cb
        b(f"v_pk_fma_f32 {p2(E32+2*cb)}, {p2(M)}, {p2(h+4)}, {p2(E32+2*cb)} {SW}")
    b(f"v_and_b32 v{vT1}, 31, v{vLANE}"); b(f"v_lshlrev_b32 v{vT1}, 5, v{vT1}")
    b(f"s_lshl_b32 s{sT0}, s{sWV}, 10"); b(f"s_add_u32 s{sT0}, s{sT0}, {SCX - 3072}"); b(f"v_add_u32 v{vT0}, s{sT0}, v{vT1}")
    b(f"ds_write_b128 v{vT0}, {v(E32,4)} offset:3072"); b(f"ds_write_b128 v{vT0}, {v(E32+4,4)} offset:3088")
    b(f"s_lshl_b32 s{sT0}, s{sWV}, 3"); b(f"v_add_u32 v{vT3}, s{sT0}, v{vT1}")
    b(f"v_cmp_gt_u32 vcc, 32, v{vLANE}"); b(f"v_mov_b32 v{vK2+1}, {OOB}")
    b(f"v_cndmask_b32 v{vK2+1}, v{vK2+1}, v{vL16}, vcc")
    b("s_waitcnt lgkmcnt(0)"); b("s_barrier")
    b(f"ds_read2st64_b64 {v(EO,4)}, v{vT3} offset0:{SCX//512} offset1:{SCX//512+2}")
    b(f"ds_read2st64_b64 {v(EO+4,4)}, v{vT3} offset0:{SCX//512+4} offset1:{SCX//512+6}")
    EWr = [lambda cb: 36 + 2 * cb, lambda cb: 52 + 2 * cb, lambda cb: (60 + 2 * cb if cb < 2 else 76 + 2 * cb)]
    for i in range(3):
        b(f"ds_read_b128 {v(EWr[i](0),4)}, v{vT0} offset:{1024*i}"); b(f"ds_read_b128 {v(EWr[i](2),4)}, v{vT0} offset:{1024*i+16}")
    for i in range(1, 4): pcfma(b, EO + 2 * i, LO32, EO + 2 * i - 2, EO + 2 * i)
    b(f"v_mov_b32 v{EO+8}, s{sTOK}")
    b(f"buffer_store_dwordx3 {v(EO+6,3)}, v{vK2+1}, {srd(S_E)}, s{sSO[3]} offen sc1")
    stamp(b, 'pub', 2)
    for i in range(1, 3):
        for ph in range(2):
            for cb in range(4):
                M = LM + 4 * cb + 2
                b(f"v_pk_fma_f32 {p2(EWr[i](cb))}, {p2(M)}, {p2(EWr[i-1](cb))}, {p2(EWr[i](cb))} {SW if ph else BA}")
    PW = EWr[2]
    for cb in range(4): b(f"ds_read_b64 {p2(AT+2*cb)}, v{vT2} offset:{2048*cb}")
    for ph in range(2):
        for cb in range(4):
            h = H + 8 * cb; M = LM + 4 * cb
            b(f"v_pk_fma_f32 {p2(h+4)}, {p2(M)}, {p2(PW(cb))}, {p2(h+4)} {SW if ph else BA}")
    for cb in range(4):
        h = H + 8 * cb
        b(f"v_cndmask_b32 v{h+6}, v{h+4}, v{PW(cb)}, vcc")
        b(f"v_cndmask_b32 v{h+4}, v{h+5}, v{PW(cb)+1}, vcc")
    a1i, a1c = poll_pair(af_issue(1), af_check('ffn'), 'a1')
    b.add(a1i)
    ER = [36 + 4 * i for i in range(7)] + [6]
    def lb_loads(bb):
        for i in range(8):
            if i % 4 == 0: bb(f"s_add_u32 s{sT0}, s{sSO[3]}, {512 + 1024 * i}")
            bb(f"buffer_load_dwordx3 {v(ER[i],3)}, v{vL16}, {srd(S_E)}, s{sT0} offen offset:{1024*(i%4)} sc1")
    vNT = 10
    def lb_check(bb):
        bb(f"v_add3_u32 v{vT0}, v{ER[0]+2}, v{ER[1]+2}, v{ER[2]+2}")
        bb(f"v_add3_u32 v{vT0}, v{ER[3]+2}, v{ER[4]+2}, v{vT0}")
        bb(f"v_add3_u32 v{vT0}, v{ER[5]+2}, v{ER[6]+2}, v{vT0}")
        bb(f"v_add_u32 v{vT0}, v{ER[7]+2}, v{vT0}")
        bb(f"v_cmp_ne_u32 vcc, v{vNT}, v{vT0}")
        bb("s_cmp_lg_u64 vcc, 0")
    for cb in range(4):
        h = H + 8 * cb; L = L8 + 2 * cb
        cfma(b, h + 7, h + 5, L, L + 1, h + 6, h + 4, h, h + 2)
    for cb in range(4):
        h = H + 8 * cb; L = L8 + 2 * cb
        cmul(b, h + 1, h + 3, L, L + 1, AT + 2*cb, AT + 2*cb + 1)
        b(f"v_mov_b32 v{h}, v{AT+2*cb}"); b(f"v_mov_b32 v{h+2}, v{AT+2*cb+1}")
    lb_loads(b)
    cmul(b, L256, L256 + 1, LO128, LO128 + 1, LO128, LO128 + 1)
    b(f"v_lshrrev_b32 v{vNT}, 5, v{vLANE}"); b(f"s_add_u32 s{sT1}, s{sRB}, 1"); b(f"v_sub_u32 v{vNT}, s{sT1}, v{vNT}")
    b(f"v_lshrrev_b32 v{vNT}, 1, v{vNT}"); b(f"v_mul_lo_u32 v{vNT}, v{vNT}, s{sTOK}")
    SE = 72
    b(f"v_bfe_u32 v{vT0}, v{vLANE}, 3, 1"); b(f"v_lshlrev_b32 v{vT0}, 4, v{vT0}")
    b(f"v_mov_b32 v{vT2}, 0x3f80"); b(f"v_lshlrev_b32 v{vT2}, v{vT0}, v{vT2}")
    b(f"v_lshrrev_b32 v{vT0}, 1, v{vLANE}"); b(f"v_xor_b32 v{vT0}, v{vT0}, v{vLANE}"); b(f"v_and_b32 v{vT0}, 16, v{vT0}")
    b(f"v_and_or_b32 v{vT0}, v{vLANE}, 7, v{vT0}")
    for k in range(8):
        b(f"v_cmp_eq_u32 vcc, {k}, v{vT0}"); b(f"v_cndmask_b32 v{SE+k}, 0, v{vT2}, vcc")
    b(f"v_add_u32 v{vT3}, {HXL}, v{vT3}"); b(f"v_add_u32 v{vT1}, {HXL}, v{vT1}")
    slow_loop(b, lb_loads, lb_check, 1)
    stamp(b, 'lb', 2)
    for i in range(6, -1, -1): pcfma(b, ER[i], L256, ER[i + 1], ER[i])
    G0 = ER[0]
    b(f"v_mov_b32 v{G0+2}, v{G0}"); b(f"v_mov_b32 v{G0+3}, v{G0+1}")
    b(f"v_permlane32_swap_b32 v{G0}, v{G0+2}"); b(f"v_permlane32_swap_b32 v{G0+1}, v{G0+3}")
    pcfma(b, G0, LO128, G0 + 2, G0)
    b(f"ds_write_b64 v{vT3}, {p2(G0)}")
    b.add(a1c, a_pf(0, 11))
    b.add(W(P.btok[5]))
    b("s_waitcnt lgkmcnt(0)"); b("s_barrier")
    HX = 6
    b(f"ds_read_b128 {v(HX,4)}, v{vT1}"); b(f"ds_read_b128 {v(HX+4,4)}, v{vT1} offset:16")
    t2 = B()
    for cb in range(4):
        h = H + 8 * cb; X = HX + 2 * cb
        t2(f"v_pk_fma_f32 {p2(h+6)}, {p2(X)}, {p2(h)}, {p2(h+6)} {BA}")
        t2(f"v_pk_fma_f32 {p2(h+4)}, {p2(X)}, {p2(h+2)}, {p2(h+4)} {BA}")
    for cb in range(4):
        h = H + 8 * cb; X = HX + 2 * cb
        t2(f"v_pk_fma_f32 {p2(h+6)}, {p2(X)}, {p2(h+2)}, {p2(h+6)} {BB}{NEG}")
        t2(f"v_pk_fma_f32 {p2(h+4)}, {p2(X)}, {p2(h)}, {p2(h+4)} {BB}")
    for j in range(8):
        for ph in range(2):
            for cb in range(4):
                L = LB + 2 * cb
                if j == 0: pr, pi = H + 8 * cb + 6, H + 8 * cb + 4
                else: pr, pi = RE(cb) + 2 * j - 2, IM(cb) + 2 * j - 2
                nr, ni = RE(cb) + 2 * j, IM(cb) + 2 * j
                if ph == 0:
                    t2(f"v_pk_fma_f32 {p2(nr)}, {p2(L)}, {p2(pr)}, {p2(nr)} {BA}")
                    t2(f"v_pk_fma_f32 {p2(ni)}, {p2(L)}, {p2(pi)}, {p2(ni)} {BA}")
                else:
                    t2(f"v_pk_fma_f32 {p2(nr)}, {p2(L)}, {p2(pi)}, {p2(nr)} {BB}{NEG}")
                    t2(f"v_pk_fma_f32 {p2(ni)}, {p2(L)}, {p2(pr)}, {p2(ni)} {BB}")
    b.add(interleave(t2.l, [P.ld() for _ in range(12)], 10))
    stamp(b, 'ps2', 2)
    DB = [6, 36, 92, 108]
    blks = [(cb, ri) for cb in range(4) for ri in range(2)]
    def cin(n):
        cb, ri = blks[n]; r = IM(cb) if ri else RE(cb)
        return [I(f"v_cvt_pk_bf16_f32 v{r+j}, v{r+2*j}, v{r+2*j+1}") for j in range(8)]
    stoks = []
    def cout(n):
        d = DB[n % 4]; l = []
        for u in range(2):
            l += [I(f"v_cvt_pk_bf16_f32 v{d+4*u+j}, v{d+8*u+2*j}, v{d+8*u+2*j+1}") for j in range(4)]
            t = I(f"buffer_store_dwordx4 {v(d+4*u,4)}, v{vST}, {srd(S_A2)}, s{sSO[0]} offen offset:{512*u} sc1")
            l.append(t); stoks.append(t)
        l.append(I(f"s_add_u32 s{sSO[0]}, s{sSO[0]}, {A2_STEP}"))
        return l
    b.add(cin(0))
    for n in range(8):
        cb, ri = blks[n]; r = IM(cb) if ri else RE(cb); d = DB[n % 4]
        b(f"v_mfma_f32_32x32x16_bf16 {v(d,16)}, {v(r,4)}, {v(SE,4)}, 0")
        if n + 1 < 8: b.add(cin(n + 1))
        b(f"v_mfma_f32_32x32x16_bf16 {v(d,16)}, {v(r+4,4)}, {v(SE+4,4)}, {v(d,16)}")
        if n >= 1: b.add(cout(n - 1))
    b.add(cout(7))
    stamp(b, 'trs', 2)
    a2i, a2c = poll_pair(af_issue(2), af_check('ffn'), 'a2')
    a3i, a3c = poll_pair(af_issue(3), af_check('ffn'), 'a3')
    asi, asc = poll_pair(af_issue(3), af_check('all'), 'as')
    b.add(a2i)
    for _ in range(10): b.add(P.ld())
    for grp in P.bdma(6): b.add(grp)
    PD = 40
    pd = OPT['pd'] if OPT['apf'] else 0
    plan = [('at', [W(stoks)] + flag_store(3, vT0) + stamp_ins('flg', 2) + a2c + a_pf(11, 11), 30), ('A', 22),
            ('at', a3i, 10 * OPT['s_c3'] - PD), ('at', a3c + a_pf(22, 5), 10 * OPT['s_c3']),
            ('at', asi, 10 * OPT['s_cs'] - PD), ('at', asc + a_pf(27, 20), 10 * OPT['s_cs']), ('A', 10), ('at', [], 10 * OPT['s_cs'] + pd), ('A', 40)]
    phase2(b, P, plan, [0, 1, 2, 3, 4, 5])
    return b

def main():
    pro = prologue(); ffn = ffn_path(); ssm = ssm_path()
    pl, n0 = resolve_stamps(pro.l, 0)
    fl, n1 = resolve_stamps(ffn.l, len(n0))
    sl, n2 = resolve_stamps(ssm.l, len(n0))
    out = []; stats = {}
    st = finalize(pl, State(), out, stats)
    st2 = st.copy()
    finalize(fl, st, out, stats)
    finalize(sl, st2, out, stats)
    for sp in slow_paths: finalize(sp.l, State(), out, stats)
    print("stats", stats, "instrs", len(out), file=sys.stderr)
    ref = open('parallel_sum__ssm_conv_s5__geglu_ffn__prompt.s.ref').read().split('\n')
    hdr = [l for l in ref if l.startswith(';') and '@launch' not in l]
    L = hdr + [f"; @launch grid=(256,1,1) block=(256,1,1) lds={LDS_BYTES}",
               '.amdgcn_target "amdgcn-amd-amdhsa--gfx950"', '.text', f'.globl {KNAME}', '.p2align 8',
               f'.type {KNAME},@function', f'{KNAME}:']
    for i in out:
        t = i.text
        if t.startswith('<'): continue
        t = t.replace('NPAGES_M1', '((L_end-L_pc0)>>12)-1')
        L.append(t if i.kind == 'label' else '  ' + t)
    L += ['L_end:', '  s_endpgm', '.section .rodata,"a"', '.p2align 6', f'.amdhsa_kernel {KNAME}',
          '  .amdhsa_next_free_vgpr 512', '  .amdhsa_next_free_sgpr 102', '  .amdhsa_accum_offset 256',
          '  .amdhsa_group_segment_fixed_size 0', '  .amdhsa_kernarg_size 128', '  .amdhsa_user_sgpr_count 2',
          '  .amdhsa_user_sgpr_kernarg_segment_ptr 1', '  .amdhsa_system_sgpr_workgroup_id_x 1', '.end_amdhsa_kernel', '']
    open(sys.argv[1], 'w').write('\n'.join(L))
    json.dump({'ffn': n0 + n1, 'ssm': n0 + n2, 'map': OPT['map']}, open(sys.argv[1] + '.json', 'w'))

main()
```

```python
import sys, math, struct, os, json
from collections import deque
from asmfw import *

KNAME = "parallel_sum__ssm_conv_s5__geglu_ffn__prompt_kernel"
OPT = dict(stamps=0, warm=1, dbgts=0, sk=12, xd=50, apf=1, bpf=1, pd=40, ost=0, delay=0, cpf=0, prc=7, wnt=1, map=3,
           bfc=16, sl=260, lc=74, g_s1=0, g_s2=60, g_l2=130, g_l3=220, h_s1=20, h_s2=90, h_l2=130, h_l3=220, lbd=5, bdd=1, a1d=0, vc=20, bud=2, bst=3)
for a_ in sys.argv[2:]:
    k_, v_ = a_.split('='); assert k_ in OPT, k_; OPT[k_] = int(v_)

VMEM_COST[0] = OPT['vc']
def f32(x): return "0x%08x" % struct.unpack('<I', struct.pack('<f', x))[0]

RING = 0; NSLOT = 4; XST = 65536; NX = 4; XSZ = 20480; SMALL = 147456
STAT = SMALL; CSX = SMALL + 1024; TB0 = SMALL + 5120; TB1 = TB0 + 2048; TB2 = TB1 + 2048; TBC = TB2 + 6144
SCX = [XST, 61440]
XS4 = 4 * 4096
LDS_BYTES = 163840
assert TBC + 16 <= LDS_BYTES
ST_L1, ST_S1, ST_S2, ST_L2, ST_L3 = 0, 22, 42, 62, 84
WS_A2 = 0; A2_STEP = 131072; WS_B2 = 96 * A2_STEP; B2_STEP = 40960
WS_FLG = WS_B2 + 96 * B2_STEP
F_BF = 131072; F_T = F_BF + 196608; F_E = F_T + 4096; F_TS = 524288; F_XB = 786432; F_W2 = F_XB + 1024 * 5120; F_WF = F_W2 + 819200; F_ST = F_WF + 51200; F_SIZE = F_ST + 16384
assert F_E + 20 * 8192 <= F_TS
def BSLOT(j): k = j % 7; return XST + XSZ * k if k < 4 else XSZ * (k - 4)
OOB = 0x7F000000

S_X, S_W, S_A2, S_B2, S_F, S_OUT, S_P0, S_P1, S_E = 40, 44, 48, 52, 56, 64, 68, 72, 76
sWST, sTOK, sPX, sPW = 60, 61, 62, 63
sRB, sCG, sWV, sT0, sT1, sT2, sT3 = 80, 81, 82, 83, 84, 85, 86
sXO, sWO, sM0X, sM0W = 87, 88, 89, 90
sSO = [91, 92, 93, 94]
sQ0 = 95
sMASK = 96
sA2O, sB2O, sTMO, sFLO = 98, 99, 100, 101
sCOL = [3, 4, 5]
sW0 = 6
sG = 7
P_X, P_LRE, P_LIM, P_BRE, P_BIM, P_CRE, P_CIM, P_LDT, P_DSK, P_BX, P_WG, P_WU, P_WD, P_OUT, P_DBG, P_WS = [8 + 2 * i for i in range(16)]
sQ1, sQ2 = 14, 15
sBFO, sBD = 16, 17
sKH, sM0B = 10, 11
sKH, sM0B = 28, 29
sRB2, sA2B = 30, 35
sR0, sR1, sR2, sR3 = 10, 11, 12, 13
sC2 = 34

def srd(base): return f"s[{base}:{base+3}]"
def v(i, n=1): return f"v{i}" if n == 1 else f"v[{i}:{i+n-1}]"
def a(i, n=1): return f"a{i}" if n == 1 else f"a[{i}:{i+n-1}]"
def p2(r): return f"v[{r}:{r+1}]"

class B:
    def __init__(self): self.l = []
    def __call__(self, text):
        i = I(text); self.l.append(i); return i
    def add(self, *ins):
        for i in ins:
            if isinstance(i, (list, tuple)): self.l.extend(i)
            else: self.l.append(i)
    def srd(self, dst, ptr, nbytes, off=0):
        if off:
            self(f"s_add_u32 s{dst}, s{ptr}, {off}"); self(f"s_addc_u32 s{dst+1}, s{ptr+1}, 0")
            self(f"s_and_b32 s{dst+1}, s{dst+1}, 0xffff")
        else:
            self(f"s_mov_b32 s{dst}, s{ptr}"); self(f"s_and_b32 s{dst+1}, s{ptr+1}, 0xffff")
        self(f"s_mov_b32 s{dst+2}, {nbytes}"); self(f"s_mov_b32 s{dst+3}, 0x20000")

STP = [26, 0]
def stamp_ins(name, lvl=1):
    if OPT['stamps'] and (OPT['stamps'] == lvl or lvl == 2): return [I(f"<ST {name}>:")]
    return []
def stamp(b, k, lvl=1): b.add(stamp_ins(str(k), lvl))
def resolve_stamps(l, k0):
    out = []; names = []; k = k0
    for i in l:
        if i.text.startswith('<ST '):
            if k > 0: out.append(I(f"v_writelane_b32 v0, s{STP[(k-1)%2]}, {k-1}"))
            out.append(I(f"s_memtime s[{STP[k%2]}:{STP[k%2]+1}]"))
            names.append(i.text[4:-2]); k += 1
        else: out.append(i)
    assert k <= 62
    return out, names

NT = ""
WNT = " nt" if OPT['wnt'] else ""

vLANE, vT0, vT1, vT2, vT3 = 1, 2, 3, 4, 5
vXD = 6; vXR = 10; vWD = 14; vWR = 18; vWD2 = 26; vWR2 = 30
vST = 34; vL16 = 35
vSUM = 36; vSQ = 40; vCS = 44
vPW = 52
vPRE = 53
vSEL = 60
vFR = 64; NF = 5; LA = 3
vFLG, vFLO = 84, 85
vK1, vK2, vKC = 86, 87, 88
vBFO = 89
vA = 90
vXM = 92; vQ = 100
vE = 104
vAPF, vBPF, vW2P = 124, 125, 126
vACC = 128

slow_paths = []
poll_id = [0]

def slow_loop(b, issue, checker, sleep=2):
    k = poll_id[0]; poll_id[0] += 1
    checker(b)
    b(f"s_cbranch_scc1 L_slow{k}")
    b(f"L_back{k}:")
    sp = B()
    sp(f"L_slow{k}:")
    sp(f"s_sleep {sleep}")
    issue(sp)
    sp("s_waitcnt vmcnt(0)")
    sp(f"s_sub_u32 s{sTMO}, s{sTMO}, 1")
    sp(f"s_cbranch_scc1 L_back{k}")
    checker(sp)
    sp(f"s_cbranch_scc1 L_slow{k}")
    sp(f"s_branch L_back{k}")
    slow_paths.append(sp)

def af_issue(level):
    return lambda bb: bb(f"buffer_load_dword v{vFLG}, v{vFLO}, {srd(S_F)}, 0 offen offset:{4*(level-1)} sc1")
def af_check(which):
    def f(bb):
        bb(f"v_cmp_ne_u32 vcc, s{sTOK}, v{vFLG}")
        if which == 'ffn': bb(f"s_and_b64 vcc, vcc, s[{sMASK}:{sMASK+1}]")
        elif which == 'ssm': bb(f"s_andn2_b64 vcc, vcc, s[{sMASK}:{sMASK+1}]")
        else: bb("s_cmp_lg_u64 vcc, 0")
    return f
def bf_issue(which):
    def f(bb):
        if which == 'ffn': bb("s_mov_b64 exec, 0xfff")
        if which == 'ffw': bb("s_mov_b32 exec_lo, 0xfff")
        bb(f"buffer_load_dword v{vFLG}, v{vBFO}, {srd(S_F)}, 0 offen sc1")
        if which != 'all': bb("s_mov_b64 exec, -1")
    return f
def bf_check(which):
    def f(bb):
        bb(f"v_cmp_ne_u32 vcc, s{sTOK}, v{vFLG}")
        if which == 'ffn': bb("s_and_b64 vcc, vcc, 0xfff")
        else:
            if which == 'ffw': bb("s_and_b32 vcc_lo, vcc_lo, 0xfff")
            bb("s_cmp_lg_u64 vcc, 0")
    return f
def poll_pair(issue, check, nm=None):
    bi = B(); issue(bi); bc = B()
    if nm: stamp(bc, nm + 'a', 3)
    slow_loop(bc, issue, check)
    if nm: stamp(bc, nm, 3)
    return bi.l, bc.l

def pf_ins(vo, srdb, so, sc=""):
    i = I(f"buffer_load_dword a255, v{vo}, {srd(srdb)}, {so} offen{sc}")
    i.wr = set()
    return i

def a_pf(i0, n):
    if not OPT['apf']: return []
    out = []
    while n > 0:
        k = min(n, 31)
        out += [I(f"s_add_u32 s{sQ1}, s{sA2B}, {i0*2*A2_STEP}"), I(f"s_bfm_b64 exec, {2*k}, 0"), pf_ins(vAPF, S_A2, f"s{sQ1}", " sc1"), I("s_mov_b64 exec, -1")]
        i0 += k; n -= k
    return out
def b_pf(j0, n):
    l = [I(f"s_lshl1_add_u32 s{sQ1}, s{sBD}, s{sB2O}")]
    if j0: l.append(I(f"s_add_u32 s{sQ1}, s{sQ1}, {8*j0*B2_STEP}"))
    return l + [I(f"s_bfm_b64 exec, {10*n}, 0"), pf_ins(vBPF, S_B2, f"s{sQ1}", " sc1"), I("s_mov_b64 exec, -1")]

def x_dma(c):
    b = B()
    b(f"s_add_u32 m0, s{sM0X}, {(c % NX) * 4096}")
    toks = [b(f"buffer_load_dwordx4 v{vXD+i}, {srd(S_X)}, s{sXO} offen offset:{1024*i}{NT} lds") for i in range(4)]
    b(f"s_add_u32 s{sXO}, s{sXO}, 128")
    return b.l, toks

def w_dma(cc, vbase, step, newoff=None):
    b = B()
    if newoff is not None: b(f"s_mov_b32 s{sWO}, s{newoff}")
    b(f"s_add_u32 m0, s{sM0W}, {RING + (cc % NSLOT) * 16384}")
    if vbase is None: toks = [b(f"buffer_load_dwordx4 v{vL16}, {srd(S_F)}, s{sWO} offen offset:{1024*i} sc1 lds") for i in range(4)]
    else: toks = [b(f"buffer_load_dwordx4 v{vbase+i}, {srd(S_W)}, s{sWO} offen offset:{1024*i}{NT} lds") for i in range(4)]
    b(f"s_add_u32 s{sWO}, s{sWO}, {step}")
    return b.l, toks

HEAD = {}
def prologue():
    b = B()
    b("s_cmp_ge_u32 s2, 256")
    b("s_cbranch_scc1 L_end")
    b("s_load_dwordx16 s[8:23], s[0:1], 0")
    b("s_load_dwordx16 s[24:39], s[0:1], 64")
    if OPT['delay']:
        b("s_memtime s[40:41]"); b("s_waitcnt lgkmcnt(0)"); b(f"s_add_u32 s42, s40, {OPT['delay']}")
        b("L_dly:"); b("s_memtime s[40:41]"); b("s_waitcnt lgkmcnt(0)"); b("s_sub_u32 s43, s42, s40"); b("s_cmp_gt_i32 s43, 0"); b("s_cbranch_scc1 L_dly")
    b(f"v_and_b32 v{vLANE}, 63, v0")
    b(f"v_lshrrev_b32 v{vT0}, 6, v0")
    b(f"v_lshlrev_b32 v{vL16}, 4, v{vLANE}")
    b(f"v_readfirstlane_b32 s{sWV}, v{vT0}")
    if OPT['warm']:
        b(f"s_getpc_b64 s[{sT1}:{sT2}]")
        b("L_pc0:")
        b(f"s_lshr_b32 s{sT0}, s2, 3")
        b(f"s_min_u32 s{sT0}, s{sT0}, NPAGES_M1")
        b(f"s_lshl_b32 s{sT0}, s{sT0}, 12")
        b(f"v_lshlrev_b32 v{vT1}, 4, v0")
        b(f"v_add_u32 v{vT1}, s{sT0}, v{vT1}")
        i = b(f"global_load_dword a255, v{vT1}, s[{sT1}:{sT2}]"); i.wr = set()
    b(f"s_bfe_u32 s{sRB}, s2, 0x40003"); b(f"s_and_b32 s{sCG}, s2, 7"); b(f"s_lshr_b32 s{sT0}, s2, 7"); b(f"s_lshl3_add_u32 s{sCG}, s{sT0}, s{sCG}")
    b(f"s_lshl4_add_u32 s{sPX}, s{sRB}, s{sCG}"); b(f"s_lshl2_add_u32 s{sPX}, s{sPX}, s{sWV}"); b(f"s_mul_i32 s{sPX}, s{sPX}, 2560")
    b(f"s_lshl2_add_u32 s{sXO}, s{sRB}, s{sWV}"); b(f"s_mul_i32 s{sXO}, s{sXO}, 40960")
    b(f"s_mul_i32 s{sM0X}, s{sWV}, {XSZ}"); b(f"s_add_u32 s{sM0X}, s{sM0X}, {XST}")
    b(f"s_lshl_b32 s{sM0W}, s{sWV}, 12")
    b(f"s_and_b32 s{sT2}, s{sWV}, 1")
    b(f"v_and_b32 v{vE}, 7, v{vLANE}")
    b(f"v_lshrrev_b32 v{vT1}, 4, v{vLANE}")
    b(f"v_xor_b32 v{vT0}, v{vE}, v{vT1}")
    b(f"v_lshlrev_b32 v{vT0}, 4, v{vT0}")
    b(f"v_xor_b32 v{vT1}, 64, v{vT0}")
    b(f"v_lshrrev_b32 v{vT2}, 3, v{vLANE}")
    b(f"v_mul_u32_u24 v{vT3}, 1280, v{vT2}")
    b(f"v_lshlrev_b32 v{vE+8}, 7, v{vLANE}")
    b(f"s_cmp_ge_u32 s{sCG}, 11")
    b("s_cbranch_scc1 L_h_ssm")
    for i in range(4):
        b(f"v_add_u32 v{vXD+i}, v{vT3}, v{vT0 if i % 2 == 0 else vT1}")
        if i: b(f"v_add_u32 v{vXD+i}, {i*(10240-1024)}, v{vXD+i}")
    b(f"s_mul_i32 s{sT0}, s{sCG}, 320"); b(f"s_and_b32 s{sT1}, s{sCG}, 1"); b(f"s_lshl_b32 s{sT3}, s{sT1}, 6")
    b(f"s_add_u32 s{sCOL[0]}, s{sT0}, s{sT3}"); b(f"s_add_u32 s{sCOL[1]}, s{sCOL[0]}, 128")
    b(f"s_xor_b32 s{sT1}, s{sT1}, 1"); b(f"s_lshl_b32 s{sT1}, s{sT1}, 8"); b(f"s_add_u32 s{sCOL[2]}, s{sT0}, s{sT1}")
    b(f"s_mov_b32 s{sPW}, s{sCOL[0]}")
    b(f"s_and_b32 s{sT1}, s{sWV}, 2"); b(f"s_lshl_b32 s{sT1}, s{sT1}, 1")
    b(f"v_bfe_u32 v{vE+1}, v{vLANE}, 4, 1"); b(f"v_lshlrev_b32 v{vE+1}, 1, v{vE+1}"); b(f"v_or_b32 v{vE+1}, s{sT1}, v{vE+1}")
    b(f"v_xor_b32 v{vE}, v{vE}, v{vE+1}"); b(f"v_lshlrev_b32 v{vE}, 4, v{vE}")
    b(f"v_mul_u32_u24 v{vE+1}, 3456, v{vT2}"); b(f"v_add_u32 v{vE}, v{vE}, v{vE+1}")
    b(f"s_mul_i32 s{sT3}, s{sT2}, {32*3456}")
    b(f"v_add_u32 v{vWD}, s{sT3}, v{vE}")
    for i in range(1, 4): b(f"v_add_u32 v{vWD+i}, {i*(8*3456-1024)}, v{vWD}")
    b(f"s_lshl1_add_u32 s{sT3}, s{sRB}, s{sT2}"); b(f"s_mul_i32 s{sT3}, s{sT3}, {20*3456}")
    b(f"v_mul_u32_u24 v{vPW}, 3456, v{vLANE}"); b(f"v_add_u32 v{vPW}, s{sT3}, v{vPW}")
    b(f"s_mov_b32 s{sWST}, {64*3456}"); b(f"s_mov_b32 s{S_W+2}, {640*3456}")
    b("s_waitcnt lgkmcnt(0)")
    b(f"s_cmp_ge_u32 s{sWV}, 2")
    b(f"s_cselect_b32 s{S_W}, s{P_WU}, s{P_WG}"); b(f"s_cselect_b32 s{S_W+1}, s{P_WU+1}, s{P_WG+1}")
    b("s_branch L_h_join")
    b("L_h_ssm:")
    b(f"s_sub_u32 s{sG}, s{sCG}, 11")
    b(f"v_lshrrev_b32 v{vE}, 2, v{vT2}"); b(f"v_lshlrev_b32 v{vE+4}, 4, v{vE}")
    b(f"v_and_b32 v{vE+1}, 1, v{vT2}"); b(f"v_lshl_add_u32 v{vE+4}, v{vE+1}, 3, v{vE+4}")
    b(f"v_bfe_u32 v{vE+1}, v{vT2}, 1, 1"); b(f"v_add_u32 v{vE+4}, v{vE+4}, v{vE+1}")
    b(f"v_mul_u32_u24 v{vE+4}, 1280, v{vE+4}")
    for i in range(4):
        b(f"v_add_u32 v{vXD+i}, v{vE+4}, v{vT0 if i % 2 == 0 else vT1}")
        if i: b(f"v_add_u32 v{vXD+i}, {i*(2560-1024)}, v{vXD+i}")
    b(f"s_mul_i32 s{sPW}, s{sG}, {128*1280}")
    b(f"s_mul_i32 s{sT3}, s{sT2}, {32*1280}")
    b(f"s_add_u32 s{sCOL[0]}, s{sPW}, s{sT3}"); b(f"s_add_u32 s{sCOL[1]}, s{sCOL[0]}, {64*1280}")
    b(f"v_lshlrev_b32 v{vE}, 3, v{vE}")
    b(f"v_and_b32 v{vE+1}, 3, v{vT2}"); b(f"v_add_u32 v{vE}, v{vE}, v{vE+1}"); b(f"v_mul_u32_u24 v{vE}, 1280, v{vE}")
    for i in range(4):
        b(f"v_add_u32 v{vWD+i}, v{vE}, v{vT0 if i % 2 == 0 else vT1}")
        if i: b(f"v_add_u32 v{vWD+i}, {(16*(i>>1) + 4*(i&1))*1280 - 1024*i}, v{vWD+i}")
    b(f"s_lshl1_add_u32 s{sT3}, s{sRB}, s{sT2}"); b(f"s_mul_i32 s{sT3}, s{sT3}, 2560")
    b(f"v_add_u32 v{vPW}, s{sT3}, v{vE+8}")
    b(f"s_lshr_b32 s{sT3}, s{sWV}, 1"); b(f"s_lshl1_add_u32 s{sT3}, s{sG}, s{sT3}"); b(f"s_lshl_b32 s{sT3}, s{sT3}, 7")
    b(f"v_lshl_add_u32 v{vE+9}, v{vLANE}, 1, s{sT3}")
    b(f"s_mov_b32 s{sWST}, 128"); b(f"s_mov_b32 s{S_W+2}, {640*1280}")
    b("s_waitcnt lgkmcnt(0)")
    b(f"s_cmp_ge_u32 s{sWV}, 2")
    b(f"s_cselect_b32 s{S_W}, s{P_BIM}, s{P_BRE}"); b(f"s_cselect_b32 s{S_W+1}, s{P_BIM+1}, s{P_BRE+1}")
    for k, p_ in enumerate((P_LRE, P_LIM, P_LDT)): b(f"global_load_ushort v{216+k}, v{vE+9}, s[{p_}:{p_+1}]")
    b("L_h_join:")
    stamp(b, 0, 2)
    b(f"s_and_b32 s{S_W+1}, s{S_W+1}, 0xffff"); b(f"s_mov_b32 s{S_W+3}, 0x20000")
    b.srd(S_X, P_X, 2621440)
    b("s_bfm_b64 exec, 20, 0"); b.add(pf_ins(vE + 8, S_X, f"s{sPX}"), pf_ins(vPW, S_W, f"s{sPW}", WNT)); b("s_mov_b64 exec, -1")
    if OPT['stamps']: b("s_memrealtime s[8:9]")
    b(f"s_add_u32 s{sT0}, s{P_WS}, {WS_FLG + F_T}"); b(f"s_addc_u32 s{sT1}, s{P_WS+1}, 0")
    b(f"s_mov_b32 s{sT2}, s{sT1}"); b(f"s_mov_b32 s{sT1}, s{sT0}")
    b(f"s_load_dword s{sTOK}, s[{sT1}:{sT2}], 0")
    b(f"v_cmp_gt_u32 vcc, 20, v{vLANE}"); b(f"v_mov_b32 v{vE}, {OOB}")
    b(f"v_cndmask_b32 v{vPW}, v{vE}, v{vPW}, vcc")
    stamp(b, 'iss', 2)
    b(f"s_mov_b32 s{sTMO}, 200000")
    b(f"s_cmp_eq_u32 s{sWV}, 3"); b(f"s_cselect_b32 s{sW0}, 0, {OOB}")
    b(f"v_and_b32 v{vST}, 15, v{vLANE}"); b(f"v_lshlrev_b32 v{vST}, 4, v{vST}")
    b(f"v_bfe_u32 v{vE}, v{vLANE}, 4, 1"); b(f"v_lshl_add_u32 v{vST}, v{vE}, 10, v{vST}")
    b(f"v_lshrrev_b32 v{vE}, 5, v{vLANE}"); b(f"v_lshl_add_u32 v{vST}, v{vE}, 8, v{vST}")
    b(f"s_lshl_b32 s{sT0}, s{sRB}, 2"); b(f"s_add_u32 s{sT0}, s{sT0}, s{sWV}"); b(f"s_lshl_b32 s{sT3}, s{sT0}, 11")
    b(f"v_add_u32 v{vST}, s{sT3}, v{vST}")
    b(f"s_lshl_b32 s{sFLO}, s{sT0}, 4"); b(f"s_add_u32 s{sFLO}, s{sFLO}, s{sCG}"); b(f"s_lshl_b32 s{sFLO}, s{sFLO}, 7")
    b.srd(S_A2, P_WS, 94 * A2_STEP)
    b.srd(S_B2, P_WS, 94 * B2_STEP, WS_B2)
    b.srd(S_F, P_WS, F_SIZE, WS_FLG)
    b.srd(S_OUT, P_OUT, 2048 * 640 * 4)
    sel_setup(b)
    flag_setup(b)
    b(f"s_cmp_ge_u32 s{sCG}, 11")
    b("s_cbranch_scc1 L_ssm")
    return b

def frag_addr_setup(b):
    b(f"v_and_b32 v{vE+2}, 31, v{vLANE}"); b(f"v_lshlrev_b32 v{vE+2}, 7, v{vE+2}")
    b(f"v_bfe_u32 v{vE}, v{vLANE}, 1, 3")
    b(f"v_lshrrev_b32 v{vE+1}, 5, v{vLANE}")
    b(f"v_xor_b32 v{vE}, v{vE}, v{vE+1}")
    b(f"s_lshl_b32 s{sT0}, s{sT0}, 1")
    b(f"v_xor_b32 v{vE}, s{sT0}, v{vE}")
    for k in range(4):
        b(f"v_xor_b32 v{vE+1}, {2*k}, v{vE}")
        b(f"v_lshl_add_u32 v{vXR+k}, v{vE+1}, 4, v{vE+2}")

def sel_setup(b):
    b(f"v_lshrrev_b32 v{vE}, 2, v{vLANE}"); b(f"v_lshrrev_b32 v{vE+1}, 4, v{vLANE}")
    b(f"v_xor_b32 v{vE}, v{vE}, v{vE+1}"); b(f"v_and_b32 v{vE}, 1, v{vE}")
    b(f"v_cmp_eq_u32 vcc, 0, v{vE}")
    b(f"v_mov_b32 v{vE+1}, 0x3f803f80")
    b(f"v_cndmask_b32 v{vSEL}, 0, v{vE+1}, vcc")
    for i in range(1, 4): b(f"v_mov_b32 v{vSEL+i}, v{vSEL}")

def flag_setup(b):
    b(f"s_and_b32 s{sRB2}, s2, 1"); b(f"s_bfe_u32 s{sT0}, s2, 0x10001"); b(f"s_lshl1_add_u32 s{sRB2}, s{sRB2}, s{sT0}")
    b(f"s_bfe_u32 s{sT0}, s2, 0x20003"); b(f"s_lshl2_add_u32 s{sRB2}, s{sRB2}, s{sT0}")
    b(f"s_mul_i32 s{sT0}, s{sT0}, 1280")
    b(f"v_mul_u32_u24 v{vE}, 26, v{vLANE}"); b(f"v_lshrrev_b32 v{vE}, 8, v{vE}")
    b(f"v_mul_u32_u24 v{vE}, {8*B2_STEP - 1280}, v{vE}"); b(f"v_lshl_add_u32 v{vE}, v{vLANE}, 7, v{vE}"); b(f"v_add_u32 v{vE}, s{sT0}, v{vE}")
    b(f"v_cmp_gt_u32 vcc, 60, v{vLANE}"); b(f"v_mov_b32 v{vE+1}, {OOB}"); b(f"v_cndmask_b32 v{vBPF}, v{vE+1}, v{vE}, vcc")
    b(f"s_bfe_u32 s{sKH}, s2, 0x10002")
    b(f"s_lshr_b32 s{sC2}, s2, 5"); b(f"s_lshl_b32 s{sT0}, s{sC2}, 8"); b(f"s_lshl3_add_u32 s{sC2}, s{sKH}, s{sC2}")
    b(f"v_lshrrev_b32 v{vE}, 1, v{vLANE}"); b(f"v_lshl_add_u32 v{vE}, v{vE}, 18, s{sT0}")
    b(f"v_and_b32 v{vE+1}, 1, v{vLANE}"); b(f"v_lshl_add_u32 v{vAPF}, v{vE+1}, 7, v{vE}")
    b(f"s_lshl2_add_u32 s{sT3}, s{sRB2}, s{sWV}"); b(f"s_lshl_b32 s{sT3}, s{sT3}, 11")
    b(f"v_and_b32 v{vFLO}, 15, v{vLANE}")
    b(f"v_cmp_gt_u32 s[{sMASK}:{sMASK+1}], 11, v{vFLO}")
    b(f"v_lshl_add_u32 v{vFLO}, v{vFLO}, 7, s{sT3}")
    b(f"s_lshl_b32 s{sT0}, s{sKH}, 17"); b(f"s_add_u32 s{sA2O}, s{sT3}, s{sT0}"); b(f"s_mov_b32 s{sA2B}, s{sA2O}")
    b(f"s_lshl_b32 s{sT0}, s{sKH}, 10"); b(f"v_add_u32 v{vA}, s{sT0}, v{vL16}"); b(f"v_xor_b32 v{vA+1}, 1024, v{vA}")
    b(f"s_and_b32 s{sT2}, s{sC2}, 7"); b(f"s_mul_i32 s{sB2O}, s{sT2}, 5120")
    b(f"s_lshl_b32 s{sT0}, s{sWV}, 1"); b(f"s_add_u32 s{sT0}, s{sT0}, s{sKH}"); b(f"s_mul_i32 s{sT1}, s{sT0}, {B2_STEP}")
    b(f"s_add_u32 s{sB2O}, s{sB2O}, s{sT1}"); b(f"s_lshl_b32 s{sT1}, s{sKH}, 12"); b(f"s_add_u32 s{sB2O}, s{sB2O}, s{sT1}")
    b(f"s_mul_i32 s{sBD}, s{sKH}, -2048")
    b(f"s_mul_i32 s{sM0B}, s{sWV}, 5120")
    b(f"v_lshrrev_b32 v{vE}, 1, v{vLANE}"); b(f"v_min_u32 v{vE}, 11, v{vE}")
    b(f"v_lshl_add_u32 v{vE}, v{vE}, 3, s{sT0}"); b(f"v_min_u32 v{vE}, 93, v{vE}")
    b(f"v_subrev_u32 v{vE+1}, {ST_S1}, v{vE}"); b(f"v_cmp_lt_u32 vcc, 39, v{vE+1}")
    b(f"v_and_b32 v{vE+1}, -2, v{vE}"); b(f"v_cndmask_b32 v{vE}, v{vE+1}, v{vE}, vcc")
    b(f"s_mul_i32 s{sT0}, s{sT2}, 5"); b(f"s_lshr_b32 s{sT0}, s{sT0}, 2"); b(f"s_lshl_b32 s{sT2}, s{sT2}, 1")
    b(f"v_mov_b32 v{vE+1}, s{sT2}"); b(f"v_mov_b32 v{vE+2}, s{sT0}"); b(f"v_cndmask_b32 v{vE+1}, v{vE+1}, v{vE+2}, vcc")
    b(f"v_lshl_add_u32 v{vE}, v{vE}, 4, v{vE+1}"); b(f"v_and_b32 v{vE+1}, 1, v{vLANE}"); b(f"v_add_u32 v{vE}, v{vE}, v{vE+1}")
    b(f"v_lshlrev_b32 v{vE}, 7, v{vE}"); b(f"v_add_u32 v{vBFO}, {F_BF}, v{vE}")

def tok_setup(b):
    b("s_waitcnt lgkmcnt(0)")
    b(f"s_mul_i32 s{sTOK}, s{sTOK}, 0x9E3779B1"); b(f"s_add_u32 s{sTOK}, s{sTOK}, 0x85EBCA6B")
    b(f"s_or_b32 s{sTOK}, s{sTOK}, 0x101")

def flag_store(level, tmp):
    b = B()
    b(f"v_mov_b32 v{tmp}, s{sTOK}")
    b(f"buffer_store_dword v{tmp}, off, {srd(S_F)}, s{sFLO} offset:{4*(level-1)} sc1")
    return b.l

def bf_store(tmp):
    b = B()
    b(f"v_mov_b32 v{tmp}, s{sTOK}")
    b(f"buffer_store_dword v{tmp}, off, {srd(S_F)}, s{sBFO} sc1")
    return b.l

def bf16_round(b, dst, src):
    b(f"v_cvt_pk_bf16_f32 v{dst}, v{src}, v{src}")
    b(f"v_and_b32 v{dst}, 0xffff0000, v{dst}")

def stats_final(time_of_row, E, glob=False):
    b = B()
    t = E + 4
    b(f"v_and_b32 v{t}, 3, v{vLANE}")
    b(f"v_cmp_eq_u32 vcc, 1, v{t}")
    b(f"v_cndmask_b32 v{vSQ}, v{vSQ}, v{vSQ+1}, vcc")
    b(f"v_cmp_eq_u32 vcc, 2, v{t}")
    b(f"v_cndmask_b32 v{vSQ}, v{vSQ}, v{vSQ+2}, vcc")
    b(f"v_cmp_eq_u32 vcc, 3, v{t}")
    b(f"v_cndmask_b32 v{vSQ}, v{vSQ}, v{vSQ+3}, vcc")
    b(f"v_mov_b32 v{vSQ+1}, v{vSQ}")
    b(f"v_mul_f32 v{vSUM}, {f32(1/640)}, v{vSUM}")
    b(f"v_permlane32_swap_b32 v{vSQ}, v{vSQ+1}")
    b(f"v_add_f32 v{vSQ}, v{vSQ}, v{vSQ+1}")
    b(f"v_mul_f32 v{vSQ}, {f32(1/640)}, v{vSQ}")
    b(f"v_fma_f32 v{vSQ}, -v{vSUM}, v{vSUM}, v{vSQ}")
    b(f"v_max_f32 v{vSQ}, 0, v{vSQ}")
    bf16_round(b, vSQ, vSQ)
    b(f"v_add_f32 v{vSQ}, {f32(1e-5)}, v{vSQ}")
    bf16_round(b, vSQ, vSQ)
    b(f"v_sqrt_f32 v{vSQ}, v{vSQ}")
    b(f"v_cvt_pk_bf16_f32 v{E+3}, -v{vSUM}, -v{vSUM}")
    bf16_round(b, E + 2, vSQ)
    b(f"v_rcp_f32 v{E+1}, v{E+2}")
    b(f"v_and_b32 v{E}, 0xffff0000, v{E+3}")
    b(f"v_xor_b32 v{E}, 0x80000000, v{E}")
    b(f"v_cmp_gt_u32 vcc, 32, v{vLANE}")
    b(f"v_cndmask_b32 v{E+3}, 0, v{E+3}, vcc")
    time_of_row(b, t)
    b(f"v_lshlrev_b32 v{t}, 3, v{t}")
    if glob:
        b(f"buffer_store_dwordx2 v[{E}:{E+1}], v{t}, {srd(S_F)}, s{sR3} offen sc1")
        return b.l
    b(f"s_lshl_b32 s{sT1}, s{sWV}, 8"); b(f"s_add_u32 s{sT1}, s{sT1}, {STAT}")
    b(f"v_add_u32 v{t}, s{sT1}, v{t}")
    b(f"ds_write_b64 v{t}, v[{E}:{E+1}]")
    return b.l

def cs_pack(b, dst, src, tmp):
    b(f"v_cvt_pk_bf16_f32 v{tmp}, v{src}, v{src}")
    b(f"v_and_b32 v{tmp}, 0xffff0000, v{tmp}")
    b(f"v_sub_f32 v{dst}, v{src}, v{tmp}")
    b(f"v_cvt_pk_bf16_f32 v{dst}, v{tmp}, v{dst}")

class P2:
    def __init__(self):
        self.free = deque(); self.loc = {}; self.na = 0; self.btok = {}
    def give(self, kind, lo, hi):
        for r in range(lo, hi, 4): self.free.append((kind, r))
    def rn(self, g): return f"{g[0]}[{g[1]}:{g[1]+3}]"
    def ld(self):
        g = self.free.popleft()
        i, m = divmod(self.na, 2); self.na += 1; self.loc[(i, m)] = g
        l = [I(f"buffer_load_dwordx4 {self.rn(g)}, v{vA+m}, {srd(S_A2)}, s{sA2O} offen sc1")]
        if m == 1: l.append(I(f"s_add_u32 s{sA2O}, s{sA2O}, {2*A2_STEP}"))
        return l
    def bdma(self, j, m0all=False):
        gs = []; self.btok[j] = []
        for n in range(5):
            l = []
            if n == 0:
                l.append(I(f"s_add_u32 s{sQ2}, s{sB2O}, {j*8*B2_STEP}"))
                l.append(I(f"s_add_u32 m0, s{sM0B}, {BSLOT(j)}"))
            else:
                l.append(I(f"s_add_u32 s{sQ2}, s{sQ2}, s{sBD}"))
                if m0all and n < 4: l.append(I(f"s_add_u32 m0, s{sM0B}, {BSLOT(j)}"))
            if n == 4:
                l.append(I(f"s_add_u32 s{sQ2}, s{sQ2}, 4096"))
                l.append(I(f"s_add_u32 m0, s{sM0B}, {BSLOT(j) + 4096}"))
            t = I(f"buffer_load_dwordx4 v{vL16}, {srd(S_B2)}, s{sQ2} offen offset:{1024*(n%4)} sc1 lds")
            l.append(t); self.btok[j].append(t); gs.append(l)
        return gs

KEEP = [(0, 0), (1, 0), (0, 1), (1, 1), (0, 2)]
SEND = [(1, 4), (0, 4), (1, 3), (0, 3), (1, 2)]

def phase2(b, P, plan, synced, extra_pins=(), pipe0=0):
    ACC = 216; BR = 128; NBR = 8; RX = 160; T = 36
    vOUT, vLB1, vLB2 = T, T + 1, T + 2
    vTT = T + 4; vMR = T + 6; vX = T + 10; vD = T + 20; vBASE = 180; vCK = 200
    sO = [sSO[0], sSO[1], sSO[2], sSO[3], sCOL[0]]
    def acc(m, n): return ACC + 4 * (2 * n + m)
    q = B()
    q(f"s_lshl2_add_u32 s{sT0}, s{sRB2}, s{sWV}"); q(f"s_lshl_b32 s{sT3}, s{sT0}, 8"); q(f"s_add_u32 s{sT3}, s{sT3}, {F_ST}"); q(f"s_mul_i32 s{sT0}, s{sT0}, {32*2560}")
    q(f"s_and_b32 s{sT2}, s{sC2}, 7"); q(f"s_mul_i32 s{sT2}, s{sT2}, 320"); q(f"s_add_u32 s{sT0}, s{sT0}, s{sT2}")
    q(f"v_and_b32 v{vTT}, 15, v{vLANE}")
    q(f"s_lshl_b32 s{sT1}, s{sKH}, 7")
    q(f"v_lshl_add_u32 v{vMR}, v{vTT}, 3, s{sT1}"); q(f"v_xor_b32 v{vMR+2}, 128, v{vMR}")
    q(f"buffer_load_dwordx2 {p2(vMR)}, v{vMR}, {srd(S_F)}, s{sT3} offen sc1"); q(f"buffer_load_dwordx2 {p2(vMR+2)}, v{vMR+2}, {srd(S_F)}, s{sT3} offen sc1")
    q(f"v_mul_u32_u24 v{vOUT}, 2560, v{vTT}"); q(f"v_and_b32 v{vTT}, 48, v{vLANE}")
    q(f"v_add3_u32 v{vOUT}, v{vOUT}, v{vTT}, s{sT0}")
    q(f"v_lshrrev_b32 v{vTT+1}, 1, v{vOUT}")
    q(f"v_add_u32 v{vTT}, s{sT2}, v{vTT}"); q(f"v_lshrrev_b32 v{vTT}, 1, v{vTT}")
    q.srd(S_P1, P_DSK, 1280)
    for t, (m, n) in enumerate(KEEP):
        o0 = m * 40960 + n * 64; o1 = (1 - m) * 40960 + (4 - n) * 64
        q(f"s_mul_i32 s{sO[t]}, s{sKH}, {o1 - o0}"); q(f"s_add_u32 s{sO[t]}, s{sO[t]}, {o0}")
        q(f"s_lshr_b32 s{sT1}, s{sO[t]}, 1")
        q(f"buffer_load_dwordx2 {p2(vX+2*t)}, v{vTT+1}, {srd(S_X)}, s{sT1} offen")
        q(f"s_and_b32 s{sT1}, s{sT1}, 255")
        q(f"buffer_load_dwordx2 {p2(vD+2*t)}, v{vTT}, {srd(S_P1)}, s{sT1} offen")
    q(f"s_lshl_b32 s{sT0}, s{sRB2}, 4"); q(f"s_add_u32 s{sT0}, s{sT0}, s{sC2}"); q(f"s_lshl_b32 s{sT0}, s{sT0}, 2"); q(f"s_add_u32 s{sT0}, s{sT0}, s{sWV}")
    q(f"s_mul_i32 s{sXO}, s{sT0}, 5120"); q(f"s_add_u32 s{sXO}, s{sXO}, {F_XB}")
    q(f"s_xor_b32 s{sT0}, s{sT0}, 32"); q(f"s_mul_i32 s{sWO}, s{sT0}, 5120"); q(f"s_add_u32 s{sWO}, s{sWO}, {F_XB}")
    q(f"s_add_u32 s{sPX}, s{sXO}, 4096"); q(f"s_add_u32 s{sPW}, s{sWO}, 4096")
    for k in range(1, 4): q(f"s_lshr_b32 s{S_P0+k}, s{sTOK}, {8*k}")
    q(f"s_mov_b32 s{S_P0}, s{sTOK}")
    q(f"v_mov_b32 v{T+3}, 0xff")
    q2 = B()
    for t, (m, n) in enumerate(KEEP):
        for k in range(4):
            src = vX + 2 * t + k // 2; dsrc = vD + 2 * t + k // 2
            xv, tt, d = vBASE + 4 * t + k, vTT, vTT + 1
            if k % 2 == 0:
                q2(f"v_lshlrev_b32 v{xv}, 16, v{src}"); q2(f"v_lshlrev_b32 v{d}, 16, v{dsrc}")
            else:
                q2(f"v_and_b32 v{xv}, 0xffff0000, v{src}"); q2(f"v_and_b32 v{d}, 0xffff0000, v{dsrc}")
            q2(f"v_sub_f32 v{tt}, v{xv}, v{vMR+2*m}"); bf16_round(q2, tt, tt)
            q2(f"v_mul_f32 v{tt}, v{tt}, v{vMR+2*m+1}"); bf16_round(q2, tt, tt)
            q2(f"v_mul_f32 v{tt}, v{tt}, v{d}"); bf16_round(q2, tt, tt)
            q2(f"v_add_f32 v{xv}, v{xv}, v{tt}")
    b(f"v_add_u32 v{vLB1}, 65536, v{vL16}"); b(f"v_add_u32 v{vLB2}, 131072, v{vL16}")
    vLS = T + 30
    q0 = B()
    q0(f"v_bfe_u32 v{vLS}, v{vLANE}, 2, 2"); q0(f"v_sub_u32 v{vLS}, 0, v{vLS}"); q0(f"v_lshrrev_b32 v{vLS+1}, 4, v{vLANE}")
    q0(f"v_xor_b32 v{vLS}, v{vLS}, v{vLS+1}"); q0(f"v_and_b32 v{vLS}, 3, v{vLS}"); q0(f"v_and_b32 v{vLS+1}, 15, v{vLANE}")
    q0(f"v_lshl_add_u32 v{vLS}, v{vLS+1}, 2, v{vLS}"); q0(f"v_lshlrev_b32 v{vLS}, 4, v{vLS}")
    q0(f"v_add_u32 v{vLS+1}, 65536, v{vLS}"); q0(f"v_add_u32 v{vLS+2}, 131072, v{vLS}")
    SK = OPT['sk']
    seq = []
    frags = []
    def addf(i, n, ms):
        frags.append((i, n))
        for m in ms: seq.append((i, m, n, len(frags) - 1))
    for i in range(47 - SK):
        for n in range(5): addf(i, n, (0, 1))
    for i in range(47 - SK, 47): addf(i, 4, (0, 1)); addf(i, 3, (0, 1)); addf(i, 2, (1,))
    send_end = len(seq) - 1
    for i in range(47 - SK, 47): addf(i, 0, (0, 1)); addf(i, 1, (0, 1)); addf(i, 2, (0,))
    NG = len(seq); assert NG == 470
    first_use = {}; last_a = {}
    for g, (i, m, n, f) in enumerate(seq):
        first_use.setdefault(f, g); last_a[(i, m)] = g
    LAF = 5
    rd = {}
    def fread(f):
        i, n = frags[f]
        ad = BSLOT(i // 4) + (i % 4) * 5120 + n * 1024
        vb = vLS + (ad >> 16) if ST_S1 <= 2 * i < ST_S2 + 20 else [vL16, vLB1, vLB2][ad >> 16]
        rd[f] = I(f"ds_read_b128 {v(BR + 4*(f % NBR),4)}, v{vb} offset:{ad & 0xffff}")
        return rd[f]
    pins = [[] for _ in range(NG)]
    synced = set(synced)
    def sync_for(j, out):
        if j not in synced: out.append(W(P.btok[j])); synced.add(j)
        out.append(I("s_barrier"))
    head = []
    if 0 not in synced: sync_for(0, head)
    for f in range(LAF): head.append(fread(f))
    b.add(head)
    items = deque()
    for p in plan:
        if p[0] == 'A': items.extend([('A',)] * p[1])
        else: items.append(p)
    sync_gap = {}; first_a = {}
    for g, (i, m, n, f) in enumerate(seq):
        first_a.setdefault((i, m), g)
        if first_use[f] == g and f + LAF < len(frags): sync_gap.setdefault(frags[f + LAF][0] // 4, g)
    bq = deque()
    for j in range(12):
        if j not in P.btok:
            for k, grp in enumerate(P.bdma(j)): bq.append((grp, 0 if j < 7 else sync_gap[j - 6] + 13, sync_gap[j] - 8 + 2 * k))
    mf = []
    pipe = pipe0; FORCE = 34; LC = OPT['lc']; log = []
    for g in range(NG):
        i, m, n, f = seq[g]
        assert (i, m) in P.loc, (g, i, m)
        d = acc(m, n)
        mf.append(I(f"v_mfma_f32_16x16x32_bf16 {v(d,4)}, {v(BR + 4*(f % NBR),4)}, {P.rn(P.loc[(i,m)])}, {'0' if i == 0 else v(d,4)}"))
        if last_a[(i, m)] == g: P.free.append(P.loc[(i, m)])
        if first_use[f] == g and f + LAF < len(frags):
            j = frags[f + LAF][0] // 4
            if j > 0 and sync_gap[j] == g:
                if j not in synced or j + 6 <= 11: sync_for(j, pins[g])
                if j % 2 == 0: pins[g] += stamp_ins(f"p{j}", 2 if j in (6,) else 1)
                if j != 6: pins[g] += stamp_ins(f"p{j}", 3)
            pins[g].append(fread(f + LAF))
            continue
        if items and items[0][0] == 'at' and g >= items[0][2]:
            pins[g] += items.popleft()[1]; pipe = max(pipe, 16 * g) + 30
            continue
        da = first_a[divmod(P.na, 2)] if (items and items[0][0] == 'A' and P.free) else 9999
        db = bq[0][2] if (bq and g >= bq[0][1]) else 9999
        dl = min(da, db)
        if dl < 9999 and (pipe - 16 * g < OPT['sl'] or dl - g <= FORCE):
            if da <= db: pins[g] += P.ld(); items.popleft()
            else: pins[g] += bq.popleft()[0]
            pipe = max(pipe, 16 * g) + LC
            log.append((g, dl, pipe // 16, 'A' if da <= db else 'B'))
    assert not items and not bq, (items, bq)
    late = [(g, dl, pe, k) for (g, dl, pe, k) in log if pe + 22 > dl]
    print("phase2: last load gap", log[-1], "late loads", len(late), late[:3], late[-3:], file=sys.stderr)
    sb_ = B()
    for t, (m, n) in enumerate(SEND):
        d = acc(m, n)
        for k in range(4): sb_(f"v_bfi_b32 v{d+k}, v{T+3}, s{S_P0+k}, v{d+k}")
        sb_(f"buffer_store_dwordx4 {v(d,4)}, v{vL16}, {srd(S_F)}, s{sXO if t < 4 else sPX} offen offset:{1024*(t%4)} sc1")
    def rx_issue(bb):
        for t in range(5): bb(f"buffer_load_dwordx4 {v(RX+4*t,4)}, v{vL16}, {srd(S_F)}, s{sWO if t < 4 else sPW} offen offset:{1024*(t%4)} sc1")
    def rx_check(bb):
        for k in range(4):
            bb(f"v_xor_b32 v{vCK+k}, s{S_P0+k}, v{RX+k}")
            for t in range(1, 5): bb(f"v_bitop3_b32 v{vCK+k}, v{vCK+k}, v{RX+4*t+k}, s{S_P0+k} bitop3:0xf6")
        bb(f"v_or3_b32 v{vCK}, v{vCK}, v{vCK+1}, v{vCK+2}")
        bb(f"v_bitop3_b32 v{vCK}, v{vCK}, v{vCK+3}, v{T+3} bitop3:0xa8")
        bb(f"v_cmp_ne_u32 vcc, 0, v{vCK}")
        bb("s_cmp_lg_u64 vcc, 0")
    tq = B()
    tq(f"s_cmp_eq_u32 s2, 0"); tq(f"s_cselect_b32 s{sG}, s{sW0}, {OOB}")
    tq(f"v_and_b32 v{vCK+8}, 15, v{vLANE}"); tq(f"v_lshlrev_b32 v{vCK+8}, 7, v{vCK+8}")
    tq(f"v_lshrrev_b32 v{vCK+9}, 4, v{vLANE}"); tq(f"v_lshl_add_u32 v{vCK+8}, v{vCK+9}, 13, v{vCK+8}")
    def tk_issue(bb):
        for k in range(4):
            bb(f"s_add_u32 s{sQ0}, s{sG}, {32768*k}")
            bb(f"buffer_load_dword v{vCK+4+k}, v{vCK+8}, {srd(S_F)}, s{sQ0} offen sc1")
    def tk_check(bb):
        for k in range(4): bb(f"v_xor_b32 v{vCK+4+k}, s{sTOK}, v{vCK+4+k}")
        bb(f"v_or3_b32 v{vCK+4}, v{vCK+4}, v{vCK+5}, v{vCK+6}"); bb(f"v_or_b32 v{vCK+4}, v{vCK+4}, v{vCK+7}")
        bb(f"v_cmp_ne_u32 vcc, 0, v{vCK+4}")
        bb(f"s_cmp_eq_u32 s{sG}, 0"); bb("s_cselect_b64 vcc, vcc, 0"); bb("s_cmp_lg_u64 vcc, 0")
    tk_issue(tq)
    st = Stream()
    for g in range(NG):
        st.add(mf[g]); st.pin(g, *pins[g])
    for (g, l) in extra_pins: st.pin(g, *l)
    st.pin(send_end + 2, *stamp_ins('snd', 2))
    st.queue(sb_.l, send_end + 2, send_end + 12, name='send')
    ri = B(); rx_issue(ri)
    st.pin(min(send_end + 12 + OPT['xd'], NG - 1), *ri.l, *tq.l)
    st.queue(q0.l, 1, 60, name='ls', rate=1)
    st.queue(q.l, 20, 150, name='base0', rate=1)
    st.queue(q2.l, 170, send_end, name='base1', rate=1)
    b.add(st.schedule())
    stamp(b, 'pe', 2)
    for t, (m, n) in enumerate(KEEP):
        for h in range(2):
            r0 = acc(m, n) + 2 * h
            b(f"v_pk_add_f32 {p2(r0)}, {p2(r0)}, {p2(vBASE+4*t+2*h)}")
    slow_loop(b, rx_issue, rx_check, 1)
    stamp(b, 'rx', 2)
    for t, (m, n) in enumerate(KEEP):
        for h in range(2):
            r0 = acc(m, n) + 2 * h
            b(f"v_pk_add_f32 {p2(r0)}, {p2(r0)}, {p2(RX+4*t+2*h)}")
        b(f"buffer_store_dwordx4 {v(acc(m,n),4)}, v{vOUT}, {srd(S_OUT)}, s{sO[t]} offen{['', ' nt', ' sc1', ' sc0 sc1'][OPT['ost']]}")
    slow_loop(b, tk_issue, tk_check, 2)
    b(f"s_add_u32 s{sT0}, s{sG}, {F_T}")
    b(f"v_mov_b32 v{vT0}, s{sTOK}")
    b(f"buffer_store_dword v{vT0}, off, {srd(S_F)}, s{sT0} sc1")
    if OPT['stamps']:
        b("s_waitcnt vmcnt(0)")
        stamp(b, 'fin', 2)
        b("s_memrealtime s[30:31]")
        b("s_waitcnt lgkmcnt(0)")
        stamp(b, 'end', 2)
        b(f"v_writelane_b32 v0, s30, 63")
        b(f"v_writelane_b32 v0, s8, 62")
        b(f"s_lshl_b32 s{sT0}, s2, 2"); b(f"s_add_u32 s{sT0}, s{sT0}, s{sWV}"); b(f"s_lshl_b32 s{sT0}, s{sT0}, 8")
        b(f"s_add_u32 s{sT0}, s{sT0}, {F_TS}")
        b(f"v_lshlrev_b32 v{vT0}, 2, v{vLANE}")
        b(f"buffer_store_dword v0, v{vT0}, {srd(S_F)}, s{sT0} offen")
        if OPT['dbgts']:
            b.srd(S_P0, P_DBG, 256)
            b(f"v_readlane_b32 s{sT1}, v0, 0"); b(f"v_subrev_u32 v0, s{sT1}, v0")
            b(f"s_sub_u32 s30, s30, s8"); b(f"v_writelane_b32 v0, s30, 0")
            b(f"s_cmp_eq_u32 s2, {OPT['dbgts']-1}"); b(f"s_cselect_b32 s{sT0}, s{sW0}, {OOB}")
            b(f"buffer_store_dword v0, v{vT0}, {srd(S_P0)}, s{sT0} offen")
    b("s_endpgm")

GK1 = -2.0 * math.sqrt(2.0 / math.pi) * math.log2(math.e)
GK2 = GK1 * 0.044715

def ffn_epilogue(acc, so, tmp):
    b = B()
    for p in range(0, 8, 2):
        g = [acc + p, acc + p + 1]; u = [acc + 8 + p, acc + 9 + p]
        t = [tmp + 4 + (p % 4), tmp + 5 + (p % 4)]
        for k in range(2): b(f"v_mul_f32 v{t[k]}, v{g[k]}, v{g[k]}")
        for k in range(2): b(f"v_fma_f32 v{t[k]}, v{t[k]}, v{vK2}, v{vK1}")
        for k in range(2): b(f"v_mul_f32 v{t[k]}, v{g[k]}, v{t[k]}")
        for k in range(2): b(f"v_exp_f32 v{t[k]}, v{t[k]}")
        for k in range(2): b(f"v_mul_f32 v{u[k]}, v{g[k]}, v{u[k]}")
        for k in range(2): b(f"v_fma_f32 v{t[k]}, v{t[k]}, v{vKC}, v{vKC}")
        for k in range(2): b(f"v_rcp_f32 v{t[k]}, v{t[k]}")
        b(f"v_mul_f32 v{u[0]}, v{u[0]}, v{t[0]}")
        b(f"v_mul_f32 v{u[1]}, v{u[1]}, v{t[1]}")
        b(f"v_cvt_pk_bf16_f32 v{tmp + p//2}, v{u[0]}, v{u[1]}")
    tok = b(f"buffer_store_dwordx4 {v(tmp,4)}, v{vST}, {srd(S_A2)}, s{so} offen sc1")
    return b.l, tok

def interleave(main, extra, every):
    out = []; k = 0
    for n, i in enumerate(main):
        out.append(i)
        if n % every == every - 1 and k < len(extra): out += extra[k]; k += 1
    for e in extra[k:]: out += e
    return out

def ffn_path():
    b = B()
    vRP = 55; vRD = [176, 180]
    xi, xt, wi, wt = {}, {}, {}, {}
    CH = [(sb, c) for sb in range(3) for c in range(10 if sb < 2 else 5)]
    for cc, (sb, c) in enumerate(CH):
        wi[cc], wt[cc] = w_dma(cc, vWD if sb < 2 else None, 64 * 3456 if sb < 2 else 8192, sCOL[sb] if c == 0 else None)
    for c in range(10): xi[c], xt[c] = x_dma(c)
    b(f"s_lshr_b32 s{sT0}, s{sWV}, 1")
    frag_addr_setup(b)
    for k in range(4): b(f"v_add_u32 v{vXR+k}, s{sM0X}, v{vXR+k}")
    mat, hh, r0, pc = vE, vE + 1, vE + 2, vE + 3
    b(f"v_bfe_u32 v{mat}, v{vLANE}, 4, 1"); b(f"v_lshrrev_b32 v{hh}, 5, v{vLANE}"); b(f"v_bfe_u32 v{r0}, v{vLANE}, 2, 2")
    b(f"v_and_b32 v{pc}, 1, v{vLANE}"); b(f"v_lshlrev_b32 v{pc}, 4, v{pc}")
    b(f"v_bfe_u32 v{vE+4}, v{vLANE}, 1, 1"); b(f"v_lshl_add_u32 v{pc}, v{vE+4}, 3, v{pc}")
    b(f"v_lshl_add_u32 v{pc}, v{mat}, 13, v{pc}")
    b(f"v_lshl_add_u32 v{hh}, v{hh}, 3, v{r0}")
    b(f"v_lshrrev_b32 v{r0}, 1, v{r0}"); b(f"v_lshl_add_u32 v{r0}, v{mat}, 1, v{r0}")
    b(f"v_lshl_add_u32 v{vE+4}, v{hh}, 7, v{pc}")
    b(f"v_lshl_add_u32 v{vE+5}, v{hh}, 6, v{pc}")
    b(f"s_lshr_b32 s{sT1}, s{sWV}, 1")
    for j in range(4):
        b(f"s_add_u32 s{sT0}, s{sWV}, {j}"); b(f"s_and_b32 s{sT0}, s{sT0}, 3")
        b(f"v_xor_b32 v{vE+6}, s{sT0}, v{r0}")
        b(f"v_lshl_add_u32 v{vE+6}, v{vE+6}, 5, v{vE+4}")
        for par in range(2):
            b(f"s_xor_b32 s{sT2}, s{sT1}, {par}"); b(f"s_lshl_b32 s{sT2}, s{sT2}, 11")
            b(f"v_add_u32 v{vWR+2*j+par}, s{sT2}, v{vE+6}")
        b(f"s_lshr_b32 s{sT2}, s{sT0}, 1"); b(f"s_lshl_b32 s{sT3}, s{sCG}, 1"); b(f"s_add_u32 s{sT2}, s{sT2}, s{sT3}")
        b(f"s_lshl_b32 s{sT2}, s{sT2}, 17"); b(f"s_and_b32 s{sT0}, s{sT0}, 1"); b(f"s_lshl_b32 s{sT0}, s{sT0}, 9")
        b(f"s_add_u32 s{sSO[j]}, s{sT2}, s{sT0}")
    for j in range(2):
        b(f"s_and_b32 s{sT0}, s{sWV}, 1"); b(f"s_xor_b32 s{sT0}, s{sT0}, {j}")
        b(f"v_xor_b32 v{vE+6}, s{sT0}, v{mat}")
        b(f"v_lshl_add_u32 v{vE+6}, v{vE+6}, 5, v{vE+5}")
        for par in range(2):
            b(f"s_xor_b32 s{sT2}, s{sT1}, {par}"); b(f"s_lshl_b32 s{sT2}, s{sT2}, 10")
            b(f"v_add_u32 v{vWR2+2*j+par}, s{sT2}, v{vE+6}")
    b(f"s_and_b32 s{sT0}, s{sWV}, 2")
    b(f"v_and_b32 v{vE}, 3, v{vLANE}"); b(f"v_xor_b32 v{vE}, s{sT0}, v{vE}"); b(f"v_lshlrev_b32 v{vE}, 4, v{vE}")
    b(f"v_lshrrev_b32 v{vE+1}, 2, v{vLANE}"); b(f"v_mul_u32_u24 v{vE+1}, 3456, v{vE+1}"); b(f"v_add_u32 v{vRP}, v{vE}, v{vE+1}")
    b(f"s_and_b32 s{sT2}, s{sWV}, 1"); b(f"s_and_b32 s{sT1}, s{sCG}, 1"); b(f"s_lshl1_add_u32 s{sT1}, s{sT1}, s{sT2}")
    b(f"s_lshl2_add_u32 s{sT1}, s{sRB}, s{sT1}"); b(f"s_sub_u32 s{sT1}, 63, s{sT1}")
    b(f"s_and_b32 s{sT0}, s{sCG}, -2"); b(f"s_min_u32 s{sT0}, s{sT0}, 8")
    b(f"s_mul_i32 s{sR0}, s{sT0}, 320"); b(f"s_mul_i32 s{sT3}, s{sT1}, {16*3456}"); b(f"s_add_u32 s{sR0}, s{sR0}, s{sT3}"); b(f"s_add_u32 s{sR0}, s{sR0}, 256")
    b(f"s_lshr_b32 s{sT3}, s{sWV}, 1")
    b(f"s_lshl1_add_u32 s{sR1}, s{sT0}, s{sT3}"); b(f"s_mul_i32 s{sR1}, s{sR1}, 40"); b(f"s_add_u32 s{sR1}, s{sR1}, s{sT1}")
    b(f"s_lshl_b32 s{sR1}, s{sR1}, 10"); b(f"s_add_u32 s{sR1}, s{sR1}, {F_W2}")
    b(f"s_add_u32 s{sT0}, s{sT0}, s{sT3}"); b(f"s_mul_i32 s{sT0}, s{sT0}, 5120"); b(f"s_add_u32 s{sT0}, s{sT0}, {F_WF}")
    b(f"s_lshl_b32 s{sR2}, s{sT1}, 7"); b(f"s_add_u32 s{sR2}, s{sR2}, s{sT0}")
    b(f"s_cmp_eq_u32 s{sCG}, 10"); b(f"s_cselect_b32 s{sT1}, 63, s{sT1}")
    b(f"s_cmp_ge_u32 s{sT1}, 40"); b(f"s_cselect_b32 s{sR0}, {OOB}, s{sR0}"); b(f"s_cselect_b32 s{sR1}, {OOB}, s{sR1}"); b(f"s_cselect_b32 s{sR2}, {OOB}, s{sR2}")
    b(f"s_lshl_b32 s{sT2}, s{sT2}, 9"); b(f"s_add_u32 s{sT0}, s{sT0}, s{sT2}")
    b(f"v_bfe_u32 v{vE}, v{vLANE}, 2, 3"); b(f"v_min_u32 v{vE}, 4, v{vE}"); b(f"v_and_b32 v{vE+1}, 3, v{vLANE}"); b(f"v_lshl_add_u32 v{vE}, v{vE}, 3, v{vE+1}")
    b(f"v_lshl_add_u32 v{vE+1}, v{vE}, 7, s{sT0}")
    b(f"v_cmp_gt_u32 vcc, 32, v{vLANE}"); b(f"v_cndmask_b32 v{vBFO}, v{vE+1}, v{vBFO}, vcc")
    b(f"s_and_b32 s{sT0}, s{sRB}, 7"); b(f"s_lshl_b32 s{sT0}, s{sT0}, 7"); b(f"v_lshl_add_u32 v{vW2P}, v{vE}, 10, s{sT0}")
    b(f"s_lshl2_add_u32 s{sR3}, s{sRB}, s{sWV}"); b(f"s_lshl_b32 s{sR3}, s{sR3}, 8"); b(f"s_add_u32 s{sR3}, s{sR3}, {F_ST}")
    b(f"s_cmp_eq_u32 s{sCG}, 0"); b(f"s_cselect_b32 s{sR3}, s{sR3}, {OOB}")
    b.srd(S_P0, P_WD, 1728 * 1280)
    b(f"s_lshl_b32 s{sT0}, s{sRB}, 2"); b(f"s_add_u32 s{sT0}, s{sT0}, s{sWV}")
    b(f"s_mul_i32 s{sT1}, s{sT0}, 205"); b(f"s_lshr_b32 s{sT1}, s{sT1}, 11")
    b(f"s_mul_i32 s{sT2}, s{sT1}, 10"); b(f"s_sub_u32 s{sT0}, s{sT0}, s{sT2}")
    b(f"s_lshl_b32 s{sT2}, s{sT1}, 6"); b(f"s_add_u32 s{sT2}, s{sT2}, s{sCOL[0]}")
    b(f"s_cmp_eq_u32 s{sT1}, 4"); b(f"s_cselect_b32 s{sT2}, s{sCOL[2]}, s{sT2}")
    b(f"s_mul_i32 s{sT2}, s{sT2}, 640")
    b(f"s_lshl_b32 s{sT3}, s{sT0}, 7"); b(f"s_add_u32 s{sT2}, s{sT2}, s{sT3}")
    b(f"s_lshl_b32 s{sT3}, s{sCG}, 1"); b(f"s_add_u32 s{sT3}, s{sT3}, s{sT1}")
    b(f"s_cmp_ge_u32 s{sT1}, 2"); b(f"s_cselect_b32 s{sQ0}, {ST_L2 - 2}, 0"); b(f"s_add_u32 s{sT3}, s{sT3}, s{sQ0}")
    b(f"s_add_u32 s{sQ0}, s{sCG}, {ST_L3}")
    b(f"s_cmp_eq_u32 s{sT1}, 4"); b(f"s_cselect_b32 s{sT3}, s{sQ0}, s{sT3}")
    b(f"s_lshl_b32 s{sBFO}, s{sT3}, 4"); b(f"s_add_u32 s{sBFO}, s{sBFO}, s{sT0}"); b(f"s_lshl_b32 s{sBFO}, s{sBFO}, 7"); b(f"s_add_u32 s{sBFO}, s{sBFO}, {F_BF}")
    b(f"s_mul_i32 s{sT3}, s{sT3}, {B2_STEP}"); b(f"s_lshl_b32 s{sT0}, s{sT0}, 12"); b(f"s_add_u32 s{sT3}, s{sT3}, s{sT0}")
    b(f"s_cmp_eq_u32 s{sCG}, 10"); b(f"s_addc_u32 s{sT1}, s{sT1}, 0")
    b(f"s_cmp_gt_u32 s{sT1}, 4"); b(f"s_cselect_b32 s{sQ1}, {OOB}, s{sT2}"); b(f"s_cselect_b32 s{sG}, {OOB}, s{sT3}")
    b(f"s_cselect_b32 s{sBFO}, {OOB}, s{sBFO}")
    b(f"s_lshr_b32 s{sT3}, s{sWV}, 1"); b(f"s_lshl1_add_u32 s{sT3}, s{sCG}, s{sT3}"); b(f"s_mul_i32 s{sT3}, s{sT3}, 40960")
    b(f"s_and_b32 s{sT2}, s{sWV}, 1"); b(f"s_lshl_b32 s{sT2}, s{sT2}, 12"); b(f"s_add_u32 s{sT3}, s{sT3}, s{sT2}"); b(f"s_add_u32 s{sT3}, s{sT3}, {F_W2}")
    b(f"s_cmp_eq_u32 s{sCG}, 10"); b(f"s_cselect_b32 s{sCOL[2]}, {OOB}, s{sT3}")
    vPD = 54
    b(f"v_and_b32 v{vPD}, 7, v{vLANE}"); b(f"v_lshl_add_u32 v{vPD}, v{vPD}, 4, v{vT3}")
    b(f"v_lshrrev_b32 v{vE}, 4, v{vLANE}"); b(f"v_lshlrev_b32 v{vE}, 3, v{vE}")
    b(f"v_bfe_u32 v{vE+1}, v{vLANE}, 2, 2"); b(f"v_add_u32 v{vE}, v{vE}, v{vE+1}"); b(f"v_lshlrev_b32 v{vE}, 7, v{vE}")
    b(f"v_and_b32 v{vE+1}, 3, v{vLANE}"); b(f"v_lshl_add_u32 v{vE}, v{vE+1}, 3, v{vE}")
    b(f"v_add_u32 v{vPRE}, s{sM0X}, v{vE}")
    pb = B(); pb(f"s_add_u32 m0, s{sM0X}, {XS4}")
    pre_ld = []
    for i in range(4):
        pre_ld.append(pb(f"buffer_load_dwordx4 v{vPD}, {srd(S_P0)}, s{sQ1} offen offset:{1024*i}{WNT} lds"))
        if i < 3: pb(f"s_add_u32 s{sQ1}, s{sQ1}, {10240-1024}")
    for h_ in range(2): pb(f"buffer_load_dwordx4 {a(vRD[h_],4)}, v{vRP}, {srd(S_W)}, s{sR0} offen offset:{64*h_}{WNT}")
    pq = B(); pq.add(W(pre_ld)); pre_st = []
    for cb in range(4):
        for hf in range(2):
            pq(f"ds_read_b64_tr_b16 {a(160+4*cb+2*hf,2)}, v{vPRE} offset:{XS4 + cb*32 + hf*512}")
    pq(f"buffer_store_dwordx4 {a(vRD[0],4)}, v{vL16}, {srd(S_F)}, s{sR1} offen sc1")
    pq(f"s_add_u32 s{sR1}, s{sR1}, 81920")
    pq(f"buffer_store_dwordx4 {a(vRD[1],4)}, v{vL16}, {srd(S_F)}, s{sR1} offen sc1")
    for cb in range(4):
        pre_st.append(pq(f"buffer_store_dwordx4 {a(160+4*cb,4)}, v{vL16}, {srd(S_B2)}, s{sG} offen offset:{1024*cb} sc1"))
    if OPT['prc'] == 0: b.add(pb.l)
    b.add(xi[0], wi[0])
    stamp(b, 'adr', 2)
    if OPT['prc'] == 0: b.add(pq.l)
    b.add(xi[1], wi[1])

    st = Stream()
    main = []; corr_at = {}; n = 0; first_gap = {}; sb_last = {}
    accb = [vACC, vACC + 64, vACC]
    for cc, (sb, c) in enumerate(CH):
        nblk = 4 if sb < 2 else 2; nks = 4 if sb < 2 else 8
        for ks in range(nks):
            kk = c * nks + ks
            if sb >= 1 and c == 1 and ks == (1 if sb < 2 else 2):
                corr_at[sb - 1] = len(st.m)
                for j in range(4):
                    d = accb[sb - 1] + 16 * j
                    st.add(I(f"v_mfma_f32_32x32x16_bf16 {v(d,16)}, {v(vQ,4)}, {v(vXM + 4*(j%2),4)}, {v(d,16)}"))
            for j in range(nblk):
                d = accb[sb] + 16 * j; fr = vFR + 4 * (n % NF)
                g = st.add(I(f"v_mfma_f32_32x32x16_bf16 {v(d,16)}, {v(fr,4)}, {a(4*kk,4)}, {'0' if kk == 0 else v(d,16)}"))
                main.append((g, sb, cc, ks, j, kk)); n += 1
                if ks == 0 and j == 0: first_gap[cc] = len(main) - 1
                if j == 0 and (sb < 2 or ks % 2 == 0):
                    cs = vCS + 4 * (sb % 2)
                    st.add(I(f"v_mfma_f32_16x16x32_bf16 {v(cs,4)}, {v(vSEL,4)}, {v(fr,4)}, {'0' if kk == 0 else v(cs,4)}"))
                if sb == 0 and j == 1:
                    st.add(I(f"v_mfma_f32_16x16x32_bf16 {v(vSUM,4)}, {v(vSEL,4)}, {a(4*kk,4)}, {'0' if kk == 0 else v(vSUM,4)}"))
                if sb == 0 and j >= 2:
                    xr = a(4 * kk + 2 * (j - 2), 2)
                    st.add(I(f"v_mfma_f32_4x4x4_16b_bf16 {v(vSQ,4)}, {xr}, {xr}, {'0' if (kk == 0 and j == 2) else v(vSQ,4)}"))
            sb_last[sb] = len(st.m) - 1
    def wread(idx):
        g, sb, cc, ks, j, kk = main[idx]
        fr = vFR + 4 * (idx % NF); slot = (cc % NSLOT) * 16384
        if sb < 2: ad = vWR + 2 * j + (ks & 1); off = slot + (ks >> 1) * 4096; hs = 512
        else: ad = vWR2 + 2 * j + (ks & 1); off = slot + (ks >> 1) * 2048; hs = 256
        return [I(f"ds_read_b64_tr_b16 v[{fr}:{fr+1}], v{ad} offset:{off}"), I(f"ds_read_b64_tr_b16 v[{fr+2}:{fr+3}], v{ad} offset:{off+hs}")]
    xrd = {}
    def xread(kk):
        xrd[kk] = I(f"ds_read_b128 {a(4*kk,4)}, v{vXR + kk % 4} offset:{((kk // 4) % NX) * 4096}")
        return xrd[kk]
    b.add(W(xt[0], wt[0]))
    tok_setup(b)
    b("s_barrier"); stamp(b, 'c0', 2)
    b.add(xread(0))
    for idx in range(LA): b.add(wread(idx))
    def G(cc, k):
        return main[min(max(first_gap[cc] - LA, 0) + k, len(main) - 1)][0]
    def spread(cc, k0, groups):
        for k, grp in enumerate(groups): st.pin(G(cc, k0 + k), *(grp if isinstance(grp, list) else [grp]))
    P = P2()
    P.give('a', 160, 252)
    cs_wr = {}
    bfi, bfc = poll_pair(bf_issue('all'), bf_check('all'), 'bf')
    a1i, a1c = poll_pair(af_issue(1), af_check('ffn'), 'a1')
    s1i, s1c = poll_pair(af_issue(2), af_check('ssm'), 's1')
    def pairs(l): return [l[k:k+2] for k in range(0, len(l), 2)]
    spread(0, 1, pairs(xi[2] + wi[2] + xi[3] + wi[3]))
    PRC = OPT['prc']; BFC = OPT['bfc']
    def paced(cc, k0, step, groups):
        for k, grp in enumerate(groups): st.pin(G(cc, k0 + step * k), *grp)
    for idx in range(len(main)):
        g, sb, cc, ks, j, kk = main[idx]
        t = idx + LA
        if t < len(main):
            g2, sb2, cc2, ks2, j2, kk2 = main[t]
            if first_gap[cc2] == t:
                toks = list(wt[cc2])
                if sb2 == 0: toks += xt[cc2]
                if CH[cc2][1] == 1 and sb2 >= 1:
                    cs_wr[sb2 - 1] = [I(f"ds_write2st64_b32 v{vT2}, v{vT3}, v{vT3} offset0:0 offset1:4")]
                    toks += cs_wr[sb2 - 1]
                st.pin(g, W(toks), I("s_barrier"), *stamp_ins(f"c{cc2}", 2 if cc2 in (10, 20) else 1))
                nxt = []
                if cc2 + 3 < len(CH): nxt += wi[cc2 + 3]
                if sb2 == 0 and cc2 + 3 < 10:
                    nxt += [[W([xrd[4 * (cc2 - 1) + q] for q in range(4)]), xi[cc2 + 3][0]]] + xi[cc2 + 3][1:]
                spread(cc2, 2, nxt)
                if CH[cc2][1] == 1 and sb2 >= 1:
                    st.pin(main[idx + 1][0], I(f"ds_read2st64_b32 v[{vQ}:{vQ+1}], v{vT2} offset0:0 offset1:1"),
                           I(f"ds_read2st64_b32 v[{vQ+2}:{vQ+3}], v{vT2} offset0:2 offset1:3"))
                if cc2 == 6: st.pin(G(6, 15), pf_ins(vPW, S_W, f"s{sCOL[1]}", WNT))
                if cc2 == PRC: st.pin(G(cc2, 9), *pb.l)
                if cc2 == (PRC + 5 if PRC else 2): st.pin(G(cc2, 1), W(pre_st), *bf_store(vT0), I(f"buffer_store_dword v{vT0}, off, {srd(S_F)}, s{sR2} sc1"))
                if cc2 == BFC - 1: st.pin(G(cc2, 1), *bfi)
                if cc2 == BFC:
                    st.pin(G(cc2, 1), *bfc, I("s_mov_b32 exec_lo, 0"), pf_ins(vW2P, S_F, f"s{sCOL[2]}", " sc1"), I("s_mov_b32 exec_lo, -1"))
                    if OPT['bpf'] == 1:
                        for k in range(6): st.pin(G(cc2 + k, 8), *b_pf(2 * k, 2))
                    if OPT['bpf'] == 2:
                        for k in range(2): st.pin(G(cc2 + k, 8), *b_pf(2 * k, 2))
                    if OPT['bpf'] == 3:
                        for k in range(3): st.pin(G(cc2 + k, 9), *b_pf(4 + 3 * k, 3 if k < 2 else 2))
                    if OPT['bpf'] == 4:
                        for k in range(4): st.pin(G(cc2 + k, 9), *b_pf(3 * k, 3))
                BD0 = BFC + OPT['bdd']
                if PRC and BD0 <= cc2 <= BD0 + 3: paced(cc2, 9, 2, P.bdma(cc2 - BD0))
                if not PRC and cc2 == 11:
                    for j_ in range(4):
                        for k, grp in enumerate(P.bdma(j_, True)): st.pin(G(11 + (5 * j_ + k) // OPT['bst'], 9 + 2 * ((5 * j_ + k) % OPT['bst'])), *grp)
                if cc2 == 21: st.pin(G(20, 8 + OPT['a1d']), *a1i); st.pin(G(21, 8 + OPT['a1d']), *a1c); st.pin(G(21, 9 + OPT['a1d']), *a_pf(0, 11))
                if cc2 == 22: paced(22, 4 + OPT['a1d'], 2, [P.ld() for _ in range(22 - OPT['a1d'] // 2)])
                if cc2 == 24: st.pin(G(24, 9), *s1i)
            if sb2 == 0 and j2 == 0: st.pin(g, xread(kk2))
            st.pin(g, *wread(t))
    if PRC: st.queue(pq.l, G(PRC + 2, 10), G(PRC + 3, 8), name='pre')
    def trow(bb, t): bb(f"v_and_b32 v{t}, 31, v{vLANE}")
    store_toks = {0: [], 1: [], 2: []}
    for sb in range(2):
        q = B()
        q(f"s_lshl_b32 s{sT2}, s{sWV}, 8"); q(f"s_add_u32 s{sT2}, s{sT2}, {CSX}")
        q(f"v_lshl_add_u32 v{vT2}, v{vLANE}, 2, s{sT2}")
        cs_pack(q, vT3, vCS + 4 * (sb % 2), vT1)
        q.add(cs_wr[sb])
        bar_gap = main[first_gap[10 * (sb + 1) + 1] - LA][0]
        st.queue(q.l, sb_last[sb] + 2, bar_gap - 1, name=f"cs{sb}")
        q = B()
        if sb == 0:
            q.add(stats_final(trow, vE, True))
            q(f"v_mul_f32 v{vK1}, {f32(GK1)}, v{vE+1}")
            q(f"v_mul_f32 v{vK2}, v{vE+1}, v{vE+1}"); q(f"v_mul_f32 v{vK2}, v{vK2}, v{vE+1}"); q(f"v_mul_f32 v{vK2}, {f32(GK2)}, v{vK2}")
            q(f"v_mul_f32 v{vKC}, v{vE+2}, v{vE+2}")
            q(f"v_mov_b32 v{vSUM}, v{vE+3}")
        for k in range(8): q(f"v_mov_b32 v{vXM+k}, {'v%d' % vSUM if k in (0, 5) else 0}")
        st.queue(q.l, sb_last[sb] + 2, corr_at[sb] - 1, name=f"st{sb}")
        ca = corr_at[sb]
        st.pin(ca + 0, I(f"v_mov_b32 v{vXM}, 0"), I(f"v_mov_b32 v{vXM+2}, v{vSUM}"))
        st.pin(ca + 1, I(f"v_mov_b32 v{vXM+5}, 0"), I(f"v_mov_b32 v{vXM+7}, v{vSUM}"))
        q = B()
        for j in range(4):
            if sb == 1: q(f"s_add_u32 s{sSO[j]}, s{sSO[j]}, {ST_L2*A2_STEP}")
            l, tok = ffn_epilogue(accb[sb] + 16 * j, sSO[j], vE + 10 * (j % 2))
            q.add(l); store_toks[sb].append(tok)
        dl = G(18, 0) if sb == 0 else sb_last[2]
        st.queue(q.l, ca + 4, dl, name=f"ep{sb}")
        if sb == 0: st.pin(G(19, 8), W(store_toks[0]), *flag_store(1, vT0))
    b.add(st.schedule(lambda g, mf: mf.passes * 4 - 8 - (OPT['bud'] if mf.passes == 8 else 0)))
    print("FFN stream: gaps", len(st.m), "overflow cycles", st.over, {q['name']: q['done_gap'] for q in st.queues}, sb_last, file=sys.stderr)
    stamp(b, 'm1', 2)
    P.give('a', 0, 160)
    cs_pack(b, vT3, vCS, vT1)
    b(f"ds_write2st64_b32 v{vT2}, v{vT3}, v{vT3} offset0:0 offset1:4")
    for k in range(8): b(f"v_mov_b32 v{vXM+k}, {'v%d' % vSUM if k in (0, 2, 5, 7) else 0}")
    b.add(W(P.btok[3]))
    b("s_waitcnt lgkmcnt(0)"); b("s_barrier"); stamp(b, 'tb', 3)
    b(f"ds_read2st64_b32 v[{vQ}:{vQ+1}], v{vT2} offset0:0 offset1:1")
    b(f"ds_read2st64_b32 v[{vQ+2}:{vQ+3}], v{vT2} offset0:2 offset1:3")
    b(f"s_add_u32 s{sT0}, s{sCG}, {ST_L3}"); b(f"s_lshl_b32 s{sT0}, s{sT0}, 17")
    b(f"s_cmp_eq_u32 s{sCG}, 10"); b(f"s_cselect_b32 s{sT0}, {OOB}, s{sT0}")
    b(f"s_and_b32 s{sT1}, s{sWV}, 1"); b(f"s_lshl_b32 s{sT1}, s{sT1}, 9")
    b(f"s_add_u32 s{sSO[0]}, s{sT0}, s{sT1}"); b(f"s_xor_b32 s{sSO[1]}, s{sSO[0]}, 512")
    for j in range(2):
        d = accb[2] + 16 * j
        b(f"v_mfma_f32_32x32x16_bf16 {v(d,16)}, {v(vQ,4)}, {v(vXM+4*j,4)}, {v(d,16)}")
    for j in range(2):
        l, tok = ffn_epilogue(accb[2] + 16 * j, sSO[j], vE + 10 * j)
        store_toks[2].append(tok)
        b.add(interleave(l, P.bdma(4 + j), 12))
        if j == 0: b.add(stamp_ins('f2a', 3), W(store_toks[1]), flag_store(2, vT0), stamp_ins('f2', 3))
    stamp(b, 'ep2', 2)
    s2i, s2c = poll_pair(af_issue(3), af_check('ssm'), 's2')
    a2i, a2c = poll_pair(af_issue(2), af_check('ffn'), 'a2')
    a3i, a3c = poll_pair(af_issue(3), af_check('ffn'), 'a3')
    PD = 40; pd = OPT['pd'] if OPT['apf'] else 0
    o = OPT
    plan = [('A', 22 - P.na), ('at', s1c + a_pf(11, 10), o['g_s1']), ('at', [], o['g_s1'] + pd), ('A', 8),
            ('at', s2i, o['g_s2'] - PD), ('A', 6), ('at', s2c + a_pf(21, 10), o['g_s2']), ('A', 6 + 8),
            ('at', a2i, o['g_l2'] - PD), ('A', 6), ('at', a2c + a_pf(31, 11), o['g_l2']), ('A', 6 + 10),
            ('at', a3i, o['g_l3'] - PD), ('A', 6), ('at', a3c + a_pf(42, 5), o['g_l3']), ('A', 6 + 10)]
    phase2(b, P, plan, [0, 1, 2, 3], extra_pins=[(45, stamp_ins('f3a', 3) + [W(store_toks[2])] + flag_store(3, vT0) + stamp_ins('f3', 3))])
    return b

def cmul(b, dr, di, ar, ai, br, bi):
    b(f"v_mul_f32 v{dr}, v{ar}, v{br}"); b(f"v_mul_f32 v{di}, v{ar}, v{bi}")
    b(f"v_fma_f32 v{dr}, -v{ai}, v{bi}, v{dr}"); b(f"v_fma_f32 v{di}, v{ai}, v{br}, v{di}")
def cfma(b, dr, di, ar, ai, br, bi, cr, ci):
    b(f"v_fma_f32 v{dr}, v{ar}, v{br}, v{cr}"); b(f"v_fma_f32 v{di}, v{ar}, v{bi}, v{ci}")
    b(f"v_fma_f32 v{dr}, -v{ai}, v{bi}, v{dr}"); b(f"v_fma_f32 v{di}, v{ai}, v{br}, v{di}")
BA = "op_sel:[0,0,0] op_sel_hi:[0,1,1]"
BB = "op_sel:[1,0,0] op_sel_hi:[1,1,1]"
NEG = " neg_lo:[1,0,0] neg_hi:[1,0,0]"
SW = "op_sel:[1,1,0] op_sel_hi:[1,0,1] neg_lo:[1,0,0]"
def pcfma(b, d, L, x, c):
    b(f"v_pk_fma_f32 {p2(d)}, {p2(L)}, {p2(x)}, {p2(c)} {BA}")
    b(f"v_pk_fma_f32 {p2(d)}, {p2(L)}, {p2(x)}, {p2(d)} {SW}")

def mul2(b, pk, r, s_):
    if pk: b(f"v_pk_mul_f32 {p2(r)}, {p2(r)}, {p2(s_)}")
    else:
        for e in range(2): b(f"v_mul_f32 v{r+e}, v{r+e}, v{s_+e}")
def fma2(b, pk, d, L, hi, neg, x, c):
    if pk: b(f"v_pk_fma_f32 {p2(d)}, {p2(L)}, {p2(x)}, {p2(c)} {BB if hi else BA}{NEG if neg else ''}")
    else:
        for e in range(2): b(f"v_fma_f32 v{d+e}, {'-' if neg else ''}v{L+hi}, v{x+e}, v{c+e}")
def cf(b, d, L, x, c): cfma(b, d[0], d[1], L, L + 1, x[0], x[1], c[0], c[1])
def pr_(r): return (r, r + 1)

def ssm_path():
    b = B()
    b("L_ssm:")
    xi, xt, wi, wt = {}, {}, {}, {}
    for c in range(10): xi[c], xt[c] = x_dma(c)
    CH = [(sb, c) for sb in range(2) for c in range(10)]
    for cc, (sb, c) in enumerate(CH): wi[cc], wt[cc] = w_dma(cc, vWD, 128, sCOL[sb] if c == 0 else None)
    CR = 192; PR = 216
    AD = 120
    vCL = 127; vRSA = 127; vKA, vKB = 87, 88; vSC = 126
    sNT, sKM, sKO, sPXW = 10, 11, 12, 13
    sLB, sPUB = sSO[1], sSO[3]
    SE_ = [S_E, S_W]
    b.srd(S_P0, P_CRE, 640 * 1280); b.srd(S_P1, P_CIM, 640 * 1280)
    b(f"s_and_b32 s{sT1}, s{sRB}, 7"); b(f"s_lshr_b32 s{sT2}, s{sRB}, 3")
    b(f"s_lshl1_add_u32 s{sBFO}, s{sT1}, s{sT2}")
    b(f"s_mul_i32 s{sT1}, s{sT1}, 5"); b(f"s_mul_i32 s{sT2}, s{sT2}, 3"); b(f"s_add_u32 s{sT2}, s{sT1}, s{sT2}")
    b(f"s_and_b32 s{sT0}, s{sWV}, 1"); b(f"s_lshl1_add_u32 s{sQ1}, s{sT2}, s{sT0}"); b(f"s_mul_i32 s{sQ1}, s{sQ1}, 10240")
    b(f"s_lshr_b32 s{sT3}, s{sWV}, 1"); b(f"s_lshl1_add_u32 s{sT3}, s{sG}, s{sT3}"); b(f"s_lshl_b32 s{sT3}, s{sT3}, 7"); b(f"s_add_u32 s{sQ1}, s{sQ1}, s{sT3}")
    b(f"s_lshl_b32 s{sT3}, s{sT0}, 1")
    b(f"v_lshrrev_b32 v{AD}, 5, v{vLANE}"); b(f"v_add_u32 v{AD}, s{sT3}, v{AD}"); b(f"v_sub_u32 v{AD}, 0, v{AD}"); b(f"v_and_b32 v{AD}, 3, v{AD}")
    b(f"v_xor_b32 v{AD}, v{AD}, v{vLANE}"); b(f"v_and_b32 v{AD}, 7, v{AD}")
    b(f"v_lshl_add_u32 v{vCL}, v{AD}, 4, v{vT3}")
    for q in range(3):
        b(f"buffer_load_dwordx4 {v(CR+8*q,4)}, v{vCL}, {srd(S_P0)}, s{sQ1} offen{WNT}")
        b(f"buffer_load_dwordx4 {v(CR+8*q+4,4)}, v{vCL}, {srd(S_P1)}, s{sQ1} offen{WNT}")
        if q < 2: b(f"s_add_u32 s{sQ1}, s{sQ1}, 20480")
    b(f"v_lshl_add_u32 v{AD}, v{AD}, 6, s{sM0X}")
    b(f"v_bfe_u32 v{vCL}, v{vLANE}, 2, 1"); b(f"v_mul_u32_u24 v{vCL}, {2*B2_STEP - 64}, v{vCL}")
    b(f"v_lshl_add_u32 v{vCL}, v{vT2}, 6, v{vCL}"); b(f"v_and_b32 v{AD+1}, 7, v{vLANE}"); b(f"v_lshl_add_u32 v{vCL}, v{AD+1}, 4, v{vCL}")
    b(f"s_lshl_b32 s{sT1}, s{sG}, 15"); b(f"s_add_u32 s{sT1}, s{sT1}, {WS_FLG + F_E}")
    b(f"s_add_u32 s{S_E}, s{P_WS}, s{sT1}"); b(f"s_addc_u32 s{S_E+1}, s{P_WS+1}, 0"); b(f"s_and_b32 s{S_E+1}, s{S_E+1}, 0xffff")
    b(f"s_mov_b32 s{S_E+2}, 16384"); b(f"s_mov_b32 s{S_E+3}, 0x20000")
    b(f"s_sub_u32 s{sT1}, 15, s{sRB}"); b(f"s_lshl_b32 s{sPUB}, s{sT1}, 10"); b(f"s_add_u32 s{sPUB}, s{sPUB}, s{sW0}")
    b(f"s_lshl2_add_u32 s{sLB}, s{sWV}, s{sT1}"); b(f"s_lshl_b32 s{sLB}, s{sLB}, 10"); b(f"s_add_u32 s{sLB}, s{sLB}, 1024")
    b(f"s_lshl_b32 s{sNT}, s{sWV}, 2"); b(f"s_sub_i32 s{sNT}, s{sRB}, s{sNT}"); b(f"s_max_i32 s{sNT}, s{sNT}, 0"); b(f"s_min_i32 s{sNT}, s{sNT}, 4")
    b(f"s_lshr_b32 s{sT1}, s{sWV}, 1"); b(f"s_and_b32 s{sT0}, s{sWV}, 1")
    b(f"s_lshl_b32 s{sPXW}, s{sT1}, 11"); b(f"s_lshl_b32 s{sT3}, s{sT0}, 9"); b(f"s_add_u32 s{sPXW}, s{sPXW}, s{sT3}"); b(f"s_add_u32 s{sPXW}, s{sPXW}, {TB0}")
    b(f"s_mul_i32 s{sT3}, s{sT1}, {ST_S2 - ST_S1}"); b(f"s_lshl1_add_u32 s{sT3}, s{sT0}, s{sT3}")
    b(f"s_lshl_b32 s{sSO[0]}, s{sG}, 2"); b(f"s_add_u32 s{sSO[0]}, s{sSO[0]}, {ST_S1}"); b(f"s_add_u32 s{sT3}, s{sT3}, s{sSO[0]}")
    b(f"s_lshl_b32 s{sSO[0]}, s{sSO[0]}, 17")
    b(f"s_mul_i32 s{sSO[2]}, s{sT3}, {B2_STEP}"); b(f"s_lshl_b32 s{sT1}, s{sT2}, 10"); b(f"s_add_u32 s{sSO[2]}, s{sSO[2]}, s{sT1}")
    b(f"s_mul_i32 s{sT1}, s{sT0}, {2*B2_STEP - 512}"); b(f"s_sub_u32 s{sSO[2]}, s{sSO[2]}, s{sT1}")
    b(f"s_lshl4_add_u32 s{sBFO}, s{sT3}, s{sBFO}"); b(f"s_lshl_b32 s{sBFO}, s{sBFO}, 7"); b(f"s_add_u32 s{sBFO}, s{sBFO}, {F_BF}")
    b(f"s_add_u32 s{sPW}, s{sPW}, {64*1280}")
    b(f"s_lshl_b32 s{sKO}, s{sWV}, 11"); b(f"s_add_u32 s{sKO}, s{sKO}, {TB2 - TB0 - 2048}")
    b(f"s_cmp_lg_u32 s{sWV}, 0"); b(f"s_cselect_b32 s{sKM}, 1, 0"); b(f"s_cselect_b32 s{sKO}, s{sKO}, {TBC}")
    b(f"s_lshl_b32 s{sT0}, s{sWV}, 9"); b(f"s_add_u32 s{sT0}, s{sT0}, 32768"); b(f"v_lshl_add_u32 v{vSC}, v{vLANE}, 3, s{sT0}")
    b(f"v_and_b32 v{vKA}, 19, v{vLANE}")
    b(f"v_bfe_u32 v{vKB}, v{vLANE}, 2, 1"); b(f"v_lshl_add_u32 v{vKA}, v{vKB}, 3, v{vKA}")
    b(f"v_bfe_u32 v{vKB}, v{vLANE}, 3, 1"); b(f"v_lshl_add_u32 v{vKA}, v{vKB}, 2, v{vKA}")
    b(f"v_lshlrev_b32 v{vKA}, 4, v{vKA}"); b(f"v_add_u32 v{vKA}, {TB0}, v{vKA}")
    b(f"v_lshrrev_b32 v{vKB}, 5, v{vLANE}"); b(f"v_lshl_add_u32 v{vKB}, v{vKB}, 9, v{vKA}")
    b(f"s_mov_b32 s{sT0}, s{sWV}")
    frag_addr_setup(b)
    for k in range(4):
        b(f"v_mov_b32 v{vWR+k}, v{vXR+k}"); b(f"v_add_u32 v{vXR+k}, s{sM0X}, v{vXR+k}")
    q = B()
    lr, li, dt, zr, zi, mg = PR, PR + 1, PR + 2, PR + 3, PR + 4, PR + 5
    TA = PR + 6; TB = PR + 8; CF = PR + 10; L1 = PR + 12; Q1 = PR + 16; Q2 = PR + 20; QC = PR + 32
    LOG2E = math.log2(math.e)
    for r in (lr, li, dt): q(f"v_lshlrev_b32 v{r}, 16, v{r}")
    q(f"v_mul_f32 v{dt}, {f32(LOG2E)}, v{dt}"); q(f"v_exp_f32 v{dt}, v{dt}"); bf16_round(q, dt, dt)
    q(f"v_mul_f32 v{zr}, v{dt}, v{lr}"); q(f"v_mul_f32 v{zi}, v{dt}, v{li}")
    q(f"v_mul_f32 v{zr}, {f32(LOG2E)}, v{zr}"); q(f"v_exp_f32 v{mg}, v{zr}")
    q(f"v_mul_f32 v{zi}, 0.15915494, v{zi}")
    q(f"v_rndne_f32 v{zr}, v{zi}"); q(f"v_sub_f32 v{zi}, v{zi}, v{zr}")
    q(f"v_cos_f32 v{L1}, v{zi}"); q(f"v_sin_f32 v{L1+1}, v{zi}")
    q(f"v_mul_f32 v{L1}, v{L1}, v{mg}"); q(f"v_mul_f32 v{L1+1}, v{L1+1}, v{mg}")
    q(f"v_mul_f32 v{zr}, v{lr}, v{lr}"); q(f"v_fma_f32 v{zr}, v{li}, v{li}, v{zr}"); q(f"v_rcp_f32 v{zr}, v{zr}")
    q(f"v_add_f32 v{zi}, -1.0, v{L1}")
    q(f"v_add_f32 v{zr}, v{zr}, v{zr}")
    q(f"v_mul_f32 v{CF}, v{zi}, v{lr}"); q(f"v_fma_f32 v{CF}, v{L1+1}, v{li}, v{CF}")
    q(f"v_mul_f32 v{CF+1}, v{L1+1}, v{lr}"); q(f"v_fma_f32 v{CF+1}, -v{zi}, v{li}, v{CF+1}")
    q(f"v_mul_f32 v{CF}, v{CF}, v{zr}"); q(f"v_mul_f32 v{CF+1}, v{CF+1}, v{zr}")
    q(f"v_lshl_add_u32 v{AD+1}, v{vLANE}, 3, s{sM0X}")
    q(f"ds_write_b64 v{AD+1}, {p2(CF)} offset:{XS4}")
    def cm(d, x, y): cmul(q, d, d + 1, x, x + 1, y, y + 1)
    cm(TA, L1, L1); cm(TB, TA, TA); cm(L1 + 2, TB, TB)
    q(f"s_mov_b32 s{sWST}, {TB0}"); q(f"v_and_b32 v{AD+3}, 0x400, v{vSC}"); q(f"v_add3_u32 v{AD+2}, v{vL16}, v{AD+3}, s{sWST}")
    q(f"ds_write_b128 v{AD+2}, {v(L1,4)}")
    cm(Q1, L1 + 2, L1 + 2); cm(Q2, Q1, Q1); cm(Q2 + 4, Q2, Q2); cm(Q2 + 8, Q2 + 4, Q2); cm(Q1 + 2, Q2 + 4, Q2 + 4)
    q(f"ds_write_b128 v{AD+2}, {v(Q1,4)} offset:2048")
    cm(TA, Q1 + 2, Q1 + 2); cm(Q2 + 2, TA, TA)
    q(f"ds_write_b128 v{AD+2}, {v(Q2,4)} offset:4096")
    cm(Q2 + 6, Q2 + 2, Q2 + 2)
    q(f"ds_write_b128 v{AD+2}, {v(Q2+4,4)} offset:6144")
    cm(Q2 + 10, Q2 + 6, Q2 + 2)
    q(f"ds_write_b128 v{AD+2}, {v(Q2+8,4)} offset:8192")
    q(f"v_mov_b32 v{QC}, 1.0"); q(f"v_mov_b32 v{QC+1}, 0"); q(f"v_mov_b32 v{AD+3}, {TBC}")
    q("s_mov_b64 exec, 1"); q(f"ds_write2_b64 v{AD+3}, {p2(QC)}, {p2(QC)} offset0:0 offset1:1"); q("s_mov_b64 exec, -1")
    CO = Q1
    for k in range(4): q(f"ds_read_b128 {v(CO+4*k,4)}, v{AD} offset:{XS4 + 16*k}")
    qp = q
    U = PR; OR_ = [104, 112, 104]
    pre_st = []; qcs = []
    for k3 in range(3):
        q = B()
        for d in range(4):
            q(f"v_lshlrev_b32 v{U}, 16, v{CR+8*k3+d}"); q(f"v_lshlrev_b32 v{U+1}, 16, v{CR+8*k3+4+d}")
            q(f"v_and_b32 v{U+2}, 0xffff0000, v{CR+8*k3+d}"); q(f"v_and_b32 v{U+3}, 0xffff0000, v{CR+8*k3+4+d}")
            for e in range(2):
                ca, cb_ = CO + 4 * d + 2 * e, CO + 4 * d + 2 * e + 1
                cr, ci = U + 2 * e, U + 2 * e + 1
                q(f"v_mul_f32 v{U+4+e}, v{cr}, v{ca}"); q(f"v_fma_f32 v{U+4+e}, -v{ci}, v{cb_}, v{U+4+e}")
                q(f"v_mul_f32 v{U+6+e}, v{cr}, v{cb_}"); q(f"v_fma_f32 v{U+6+e}, v{ci}, v{ca}, v{U+6+e}")
            q(f"v_cvt_pk_bf16_f32 v{OR_[k3]+d}, v{U+4}, v{U+5}")
            q(f"v_cvt_pk_bf16_f32 v{OR_[k3]+4+d}, -v{U+6}, -v{U+7}")
        if k3 == 2:
            q(f"s_lshr_b32 s{sQ0}, s{sRB}, 3"); q(f"s_mul_i32 s{sQ0}, s{sQ0}, {OOB}"); q(f"s_add_u32 s{sSO[2]}, s{sSO[2]}, s{sQ0}")
        q(f"s_add_u32 s{sQ0}, s{sSO[2]}, {B2_STEP}")
        pre_st.append(q(f"buffer_store_dwordx4 {v(OR_[k3],4)}, v{vCL}, {srd(S_B2)}, s{sSO[2]} offen offset:{1024*k3} sc1"))
        pre_st.append(q(f"buffer_store_dwordx4 {v(OR_[k3]+4,4)}, v{vCL}, {srd(S_B2)}, s{sQ0} offen offset:{1024*k3} sc1"))
        qcs.append(q)
    b.add(qp.l); stamp(b, 'par', 2)
    b.add(xi[0], wi[0])
    stamp(b, 'adr', 2)
    b.add(qcs[0].l, xi[1], qcs[1].l, wi[1], qcs[2].l)

    accb = [vACC, vACC + 64]
    RE = lambda cb: accb[cb // 2] + 16 * (cb % 2)
    IM = lambda cb: accb[cb // 2] + 32 + 16 * (cb % 2)
    RG = [dict(RS=[26, 28, 30, 32, 96, 98, 100, 102], K0=6, K1=22, K2=120, H=36, B1=52),
          dict(RS=[64 + 2 * k for k in range(8)], K0=14, K1=60, K2=80, H=104, B1=26)]
    ER = [26, 30, 96, 100]; SE = 52
    def ch_reads(bb, hf, tmp):
        R = RG[hf]
        for k in range(8): bb(f"ds_read2_b32 {p2(R['RS'][k])}, v{vRSA} offset0:{2*k+1} offset1:{2*k+17}")
        for c in range(2): bb(f"ds_read_b128 {v(R['K0']+4*c,4)}, v{vKA} offset:{1024*hf + 512*c}")
        bb(f"ds_read_b128 {v(R['K1'],4)}, v{vKB} offset:{2048 + 1024*hf}")
        if hf: bb(f"v_add_u32 v{tmp}, 1024, v{vKB}")
        bb(f"v_mul_u32_u24 v{tmp}, s{sKM}, v{tmp if hf else vKB}"); bb(f"v_add_u32 v{tmp}, s{sKO}, v{tmp}")
        bb(f"ds_read_b128 {v(R['K2'],4)}, v{tmp}")
    def ch_zero(bb, hf):
        H = RG[hf]['H']
        bb(f"v_mov_b32 v{H}, 0"); bb(f"v_mov_b32 v{H+1}, 0")
        return bb(f"ds_write_b64 v{vSC}, {p2(H)} offset:{SCX[hf] - 32768}")
    def ch_a(bb, hf, pk):
        R = RG[hf]; H = R['H']
        for blk in range(4):
            for j in range(8): mul2(bb, pk, accb[hf] + 16 * blk + 2 * j, R['RS'][j])
        for j in range(1, 8):
            for ph in range(2):
                for c in range(2):
                    cb = 2 * hf + c; L = R['K0'] + 4 * c
                    if j == 1: pr, pi = RE(cb), IM(cb)
                    else: pr, pi = H + 8 * c + 4 * (j % 2), H + 8 * c + 4 * (j % 2) + 2
                    nr = H + 8 * c + 4 * ((j + 1) % 2); ni = nr + 2
                    if ph == 0: fma2(bb, pk, nr, L, 0, 0, pr, RE(cb) + 2 * j); fma2(bb, pk, ni, L, 0, 0, pi, IM(cb) + 2 * j)
                    else: fma2(bb, pk, nr, L, 1, 1, pi, nr); fma2(bb, pk, ni, L, 1, 0, pr, ni)
        for c in range(2):
            h = H + 8 * c
            cf(bb, (h + 1, h + 3), R['K0'] + 4 * c + 2, (h, h + 2), (h + 1, h + 3))
        cmul(bb, R['B1'] + 6, R['B1'] + 7, R['K1'], R['K1'] + 1, R['K1'], R['K1'] + 1)
        bb(f"v_permlane32_swap_b32 v{H+1}, v{H+9}"); bb(f"v_permlane32_swap_b32 v{H+3}, v{H+11}")
        cf(bb, pr_(H + 12), R['K1'], (H + 1, H + 3), (H + 9, H + 11))
        return bb(f"ds_write_b64 v{vSC}, {p2(H+12)} offset:{SCX[hf] - 32768 + 2048}")
    def ch_b(bb, hf):
        R = RG[hf]; H = R['H']; B1 = R['B1']; o = (SCX[hf] - 32768) // 512
        bb(f"ds_read2st64_b64 {v(B1,4)}, v{vSC} offset0:{o+1} offset1:{o+2}")
        bb(f"ds_read_b64 {p2(B1+4)}, v{vSC} offset:{SCX[hf] - 32768 + 1536}")
        bb(f"v_mov_b32 v{H+14}, s{sTOK}")
        cf(bb, pr_(B1 + 2), B1 + 6, pr_(B1), pr_(B1 + 2))
        cf(bb, (H + 6, H + 4), B1 + 6, pr_(B1 + 2), pr_(B1 + 4))
        cf(bb, pr_(H + 12), B1 + 6, (H + 6, H + 4), pr_(H + 12))
        bb(f"buffer_store_dwordx3 {v(H+12,3)}, v{vL16}, {srd(SE_[hf])}, s{sPUB} offen sc1")
    def lb_issue(hf):
        def f(bb):
            for i in range(4): bb(f"buffer_load_dwordx3 {v(ER[i],3)}, v{vL16}, {srd(SE_[hf])}, s{sLB} offen offset:{1024*i} sc1")
        return f
    def lb_check(bb):
        bb(f"v_add3_u32 v{ER[0]+3}, v{ER[0]+2}, v{ER[1]+2}, v{ER[2]+2}")
        bb(f"v_add_u32 v{ER[0]+3}, v{ER[3]+2}, v{ER[0]+3}")
        bb(f"v_cmp_ne_u32 vcc, s{sNT}, v{ER[0]+3}")
        bb("s_cmp_lg_u64 vcc, 0")
    def ch_part(bb, hf):
        R = RG[hf]
        bb(f"v_lshl_add_u32 v{ER[1]+3}, v{vLANE}, 3, s{sPXW}")
        for i in range(2, -1, -1): cf(bb, pr_(ER[i]), R['K1'] + 2, pr_(ER[i + 1]), pr_(ER[i]))
        cmul(bb, ER[1], ER[1] + 1, R['K2'] + 2, R['K2'] + 3, ER[0], ER[0] + 1)
        return bb(f"ds_write_b64 v{ER[1]+3}, {p2(ER[1])}")
    def ch_rdpart(bb, X):
        bb(f"v_lshlrev_b32 v{X}, 3, v{vLANE}"); bb(f"v_add_u32 v{X}, {TB0}, v{X}")
        bb(f"ds_read2st64_b64 {v(X+4,4)}, v{X} offset0:4 offset1:5"); bb(f"ds_read2st64_b64 {v(X,4)}, v{X} offset0:0 offset1:1")
    def ch_in(bb, hf, X):
        R = RG[hf]; H = R['H']
        bb(f"v_pk_add_f32 {p2(X+4)}, {p2(X+4)}, {p2(X+6)}"); bb(f"v_pk_add_f32 {p2(X)}, {p2(X)}, {p2(X+2)}"); bb(f"v_pk_add_f32 {p2(X)}, {p2(X)}, {p2(X+4)}")
        cf(bb, (H + 6, H + 4), R['K2'], pr_(X), (H + 6, H + 4))
        cf(bb, (H + 14, H + 12), R['K1'], (H + 6, H + 4), (H + 1, H + 3))
        bb(f"v_permlane32_swap_b32 v{H+6}, v{H+14}"); bb(f"v_permlane32_swap_b32 v{H+4}, v{H+12}")
        for c in range(2):
            h = H + 8 * c
            cf(bb, (h + 7, h + 5), R['K0'] + 4 * c + 2, (h + 6, h + 4), (h, h + 2))
    def ch_c(bb, hf, extra=()):
        R = RG[hf]; H = R['H']
        t2 = B()
        for j in range(8):
            for ph in range(2):
                for c in range(2):
                    cb = 2 * hf + c; L = R['K0'] + 4 * c
                    if j == 0: pr, pi = H + 8 * c + 6, H + 8 * c + 4
                    else: pr, pi = RE(cb) + 2 * j - 2, IM(cb) + 2 * j - 2
                    nr, ni = RE(cb) + 2 * j, IM(cb) + 2 * j
                    if ph == 0: fma2(t2, 1, nr, L, 0, 0, pr, nr); fma2(t2, 1, ni, L, 0, 0, pi, ni)
                    else: fma2(t2, 1, nr, L, 1, 1, pi, nr); fma2(t2, 1, ni, L, 1, 0, pr, ni)
        stamp(bb, f'in{hf}', 4)
        bb.add(interleave(t2.l, list(extra), 14))
        stamp(bb, f'ps{hf}', 4)
        blks = [RE(2 * hf), IM(2 * hf), RE(2 * hf + 1), IM(2 * hf + 1)]
        DB = [64, 36, blks[0], blks[1]]
        toks = []
        def cin(n): return [I(f"v_cvt_pk_bf16_f32 v{blks[n]+j}, v{blks[n]+2*j}, v{blks[n]+2*j+1}") for j in range(8)]
        def cout(n):
            d = DB[n]; l = []
            for u in range(2):
                l += [I(f"v_cvt_pk_bf16_f32 v{d+4*u+j}, v{d+8*u+2*j}, v{d+8*u+2*j+1}") for j in range(4)]
                t = I(f"buffer_store_dwordx4 {v(d+4*u,4)}, v{vST}, {srd(S_A2)}, s{sSO[0]} offen offset:{512*u} sc1")
                l.append(t); toks.append(t)
            l.append(I(f"s_add_u32 s{sSO[0]}, s{sSO[0]}, {A2_STEP * (1 if n < 3 else ST_S2 - ST_S1 - 3)}"))
            return l
        bb.add(cin(0))
        for n in range(4):
            r = blks[n]; d = DB[n]
            bb(f"v_mfma_f32_32x32x16_bf16 {v(d,16)}, {v(r,4)}, {v(SE,4)}, 0")
            if n + 1 < 4: bb.add(cin(n + 1))
            bb(f"v_mfma_f32_32x32x16_bf16 {v(d,16)}, {v(r+4,4)}, {v(SE+4,4)}, {v(d,16)}")
            if n >= 1: bb.add(cout(n - 1)); stamp(bb, f'o{hf}{n-1}', 4)
        bb.add(cout(3))
        return toks

    st = Stream(); main = []; first_gap = {}; sb_last = {}; corr_at = {}
    QG = [26, 30, 96, 100]
    vCS2 = [44, 104]
    n = 0
    for cc, (sb, c) in enumerate(CH):
        for ks in range(4):
            kk = c * 4 + ks
            if sb == 1 and c == 1 and ks == 2:
                corr_at[0] = len(st.m)
                for j in range(4):
                    d = accb[0] + 16 * j
                    st.add(I(f"v_mfma_f32_32x32x16_bf16 {v(d,16)}, {v(vXM,4)}, {v(QG[j],4)}, {v(d,16)}"))
            for j in range(4):
                d = accb[sb] + 16 * j; fr = vFR + 4 * (n % NF)
                g = st.add(I(f"v_mfma_f32_32x32x16_bf16 {v(d,16)}, {a(4*kk,4)}, {v(fr,4)}, {'0' if kk == 0 else v(d,16)}"))
                main.append((g, sb, cc, ks, j, kk)); n += 1
                if ks == 0 and j == 0: first_gap[cc] = len(main) - 1
                if ks == 0:
                    cs = vCS2[sb] + 4 * j
                    st.add(I(f"v_mfma_f32_16x16x32_bf16 {v(cs,4)}, {v(vSEL,4)}, {v(fr,4)}, {'0' if kk == 0 else v(cs,4)}"))
                if sb == 0 and j == 1:
                    st.add(I(f"v_mfma_f32_16x16x32_bf16 {v(vSUM,4)}, {v(vSEL,4)}, {a(4*kk,4)}, {'0' if kk == 0 else v(vSUM,4)}"))
                if sb == 0 and j >= 2:
                    xr = a(4 * kk + 2 * (j - 2), 2)
                    st.add(I(f"v_mfma_f32_4x4x4_16b_bf16 {v(vSQ,4)}, {xr}, {xr}, {'0' if (kk == 0 and j == 2) else v(vSQ,4)}"))
            sb_last[sb] = len(st.m) - 1
    def wread(idx):
        g, sb, cc, ks, j, kk = main[idx]
        fr = vFR + 4 * (idx % NF)
        return [I(f"ds_read_b128 {v(fr,4)}, v{vWR+ks} offset:{(cc % NSLOT) * 16384 + j * 4096}")]
    xrd = {}
    def xread(kk):
        xrd[kk] = I(f"ds_read_b128 {a(4*kk,4)}, v{vXR + kk % 4} offset:{((kk // 4) % NX) * 4096}")
        return xrd[kk]
    vPW2 = 22
    b(f"v_mov_b32 v{vPW2}, v{vPW}")
    stamp(b, 'cp', 2)
    b.add(W(xt[0], wt[0]))
    tok_setup(b)
    b(f"s_mul_i32 s{sNT}, s{sNT}, s{sTOK}")
    b("s_barrier"); stamp(b, 'c0', 2)
    b.add(xread(0))
    for idx in range(LA): b.add(wread(idx))
    def G(cc, k): return main[min(max(first_gap[cc] - LA, 0) + k, len(main) - 1)][0]
    def spread(cc, k0, groups):
        for k, grp in enumerate(groups): st.pin(G(cc, k0 + k), *(grp if isinstance(grp, list) else [grp]))
    def paced(cc, k0, step, groups):
        for k, grp in enumerate(groups): st.pin(G(cc, k0 + step * k), *grp)
    def cs_write(bb, sb):
        toks = []
        for j in range(4):
            cs_pack(bb, vT3, vCS2[sb] + 4 * j, vT1)
            toks.append(bb(f"ds_write_b32 v{vT2}, v{vT3} offset:{1024*j}"))
        return toks
    q0 = B()
    q0(f"s_lshl_b32 s{sT2}, s{sWV}, 2"); q0(f"s_add_u32 s{sT2}, s{sT2}, {CSX}")
    q0(f"v_add_u32 v{vT2}, s{sT2}, v{vL16}")
    q0(f"v_add_u32 v{vK1}, {CSX}, v{vL16}")
    csw0 = cs_write(q0, 0)
    qa = B()
    qa(f"v_lshrrev_b32 v{vRSA}, 5, v{vLANE}"); qa(f"s_lshl_b32 s{sQ0}, s{sWV}, 8"); qa(f"s_add_u32 s{sQ0}, s{sQ0}, {STAT}")
    qa(f"v_lshl_add_u32 v{vRSA}, v{vRSA}, 7, s{sQ0}")
    ch_reads(qa, 0, 59); ch_zero(qa, 0)
    scw0 = ch_a(qa, 0, 0)
    qb = B(); ch_b(qb, 0)
    qb.add(stamp_ins('pb0', 3))
    t0_, t1_ = ER[0], ER[0] + 1
    qb(f"v_bfe_u32 v{t0_}, v{vLANE}, 3, 1"); qb(f"v_lshlrev_b32 v{t0_}, 4, v{t0_}")
    qb(f"v_mov_b32 v{t1_}, 0x3f80"); qb(f"v_lshlrev_b32 v{t1_}, v{t0_}, v{t1_}")
    qb(f"v_lshrrev_b32 v{t0_}, 1, v{vLANE}"); qb(f"v_xor_b32 v{t0_}, v{t0_}, v{vLANE}"); qb(f"v_and_b32 v{t0_}, 16, v{t0_}")
    qb(f"v_and_or_b32 v{t0_}, v{vLANE}, 7, v{t0_}")
    for k in range(8):
        qb(f"v_cmp_eq_u32 s[18:19], {k}, v{t0_}"); qb(f"v_cndmask_b32 v{SE+k}, 0, v{t1_}, s[18:19]")
    qd = B(); pw0 = ch_part(qd, 0)
    P = P2(); P.give('a', 160, 252)
    bfi, bfc = poll_pair(bf_issue('all'), bf_check('all'), 'bf')
    l0i, l0c = poll_pair(lb_issue(0), lb_check, 'l0')
    def pairs(l): return [l[k:k+2] for k in range(0, len(l), 2)]
    spread(0, 1, pairs(xi[2] + wi[2] + xi[3] + wi[3]))
    SCB = 15
    for idx in range(len(main)):
        g, sb, cc, ks, j, kk = main[idx]
        t = idx + LA
        if t < len(main):
            g2, sb2, cc2, ks2, j2, kk2 = main[t]
            if first_gap[cc2] == t:
                toks = list(wt[cc2])
                if sb2 == 0: toks += xt[cc2]
                if cc2 == 11: toks += csw0
                if cc2 == SCB: toks += [scw0]
                if cc2 == 2: toks += pre_st
                st.pin(g, W(toks), I("s_barrier"), *stamp_ins(f"c{cc2}", 2 if cc2 == 10 else 1))
                nxt = []
                if cc2 + 3 < len(CH): nxt += wi[cc2 + 3]
                if sb2 == 0 and cc2 + 3 < 10:
                    nxt += [[W([xrd[4 * (cc2 - 1) + q] for q in range(4)]), xi[cc2 + 3][0]]] + xi[cc2 + 3][1:]
                spread(cc2, 2, nxt)
                if cc2 == 11:
                    for jj in range(4):
                        st.pin(main[idx + 1 + jj][0], I(f"ds_read_b128 {v(QG[jj],4)}, v{vK1} offset:{1024*jj}"))
                if cc2 == 6: st.pin(G(6, 15), pf_ins(vPW2, S_W, f"s{sPW}", WNT))
                if cc2 == 2: st.pin(G(2, 1), *bf_store(vT0), *flag_store(1, vT0))
                if cc2 == 15: st.pin(G(15, 9), *bfi)
                if cc2 == 16:
                    st.pin(G(16, 9), *bfc)
                    if OPT['bpf']: st.pin(G(16, 9), *b_pf(0, 4))
                if cc2 == 17:
                    st.pin(G(17, 1), I(f"s_add_u32 s{S_W}, s{S_E}, 16384"), I(f"s_addc_u32 s{S_W+1}, s{S_E+1}, 0"), I(f"s_mov_b32 s{S_W+2}, 16384"))
                    bd = P.bdma(0) + P.bdma(1) + P.bdma(2) + P.bdma(3)
                    paced(17, 6, 2, bd[:10]); st.pin(G(18, 10), *l0i); paced(18, 14, 2, bd[10:])
                if cc2 == 19: st.pin(G(19, 11), *l0c)
            if sb2 == 0 and j2 == 0: st.pin(g, xread(kk2))
            st.pin(g, *wread(t))
    bar_gap = main[first_gap[11] - LA][0]
    st.queue(q0.l, sb_last[0] - 12, bar_gap - 1, name="cs0")
    def trow(bb, t):
        bb(f"v_bfe_u32 v{t}, v{vLANE}, 2, 1"); bb(f"v_lshlrev_b32 v{t}, 4, v{t}")
        bb(f"v_and_b32 v{t+1}, 1, v{vLANE}"); bb(f"v_lshl_add_u32 v{t}, v{t+1}, 3, v{t}")
        bb(f"v_bfe_u32 v{t+1}, v{vLANE}, 3, 2"); bb(f"v_lshl_add_u32 v{t}, v{t+1}, 1, v{t}")
        bb(f"v_bfe_u32 v{t+1}, v{vLANE}, 1, 1"); bb(f"v_add_u32 v{t}, v{t}, v{t+1}")
    q = B()
    E = 8
    q.add(stats_final(trow, E))
    for k in range(4): q(f"v_mov_b32 v{vXM+k}, v{E+3}")
    st.queue(q.l, sb_last[0] + 2, G(11, 0), name="st0")
    st.queue(qa.l, corr_at[0] + 4, G(SCB, 0) - 1, name='cha')
    st.queue(qb.l, G(SCB, 0), G(18, 9), name='chb')
    q1 = B(); cs_write(q1, 1)
    st.queue(q1.l, sb_last[1] - 11, sb_last[1], name='cs1')
    st.queue(qd.l, G(19, 11), sb_last[1], name='chd')
    b.add(st.schedule(lambda g, mf: mf.passes * 4 - 8 - (OPT['bud'] if mf.passes == 8 else 0)))
    print("SSM stream: gaps", len(st.m), "overflow cycles", st.over, {q['name']: q['done_gap'] for q in st.queues}, sb_last, G(SCB, 0), file=sys.stderr)
    stamp(b, 'm1', 2)
    P.give('a', 0, 160)
    a1i, a1c = poll_pair(af_issue(1), af_check('ffn'), 'a1')
    l1i, l1c = poll_pair(lb_issue(1), lb_check, 'l1')
    b("s_waitcnt lgkmcnt(0)"); b("s_barrier"); stamp(b, 'b1', 4)
    for jj in range(4): b(f"ds_read_b128 {v(QG[jj],4)}, v{vK1} offset:{1024*jj}")
    ch_reads(b, 1, vT0)
    ch_zero(b, 1)
    for j in range(4):
        d = accb[1] + 16 * j
        b(f"v_mfma_f32_32x32x16_bf16 {v(d,16)}, {v(vXM,4)}, {v(QG[j],4)}, {v(d,16)}")
    XP = 96
    ch_rdpart(b, XP)
    stamp(b, 'cor', 4)
    ch_a(b, 1, 1)
    stamp(b, 'cha', 4)
    b("s_waitcnt lgkmcnt(0)"); b("s_barrier"); stamp(b, 'b2', 4)
    ch_b(b, 1)
    stamp(b, 'pub', 2)
    b.add(a1i)
    ch_in(b, 0, XP)
    tk0 = ch_c(b, 0)
    stamp(b, 'tr0', 2)
    bd = P.bdma(4) + P.bdma(5)
    for grp in bd[:OPT['lbd']]: b.add(grp)
    b.add(W(tk0), flag_store(2, vT0))
    stamp(b, 'fl0', 2)
    b.add(l1i)
    b.add(a1c, a_pf(0, 11))
    for grp in bd[OPT['lbd']:]: b.add(grp)
    b.add(l1c)
    stamp(b, 'lb', 2)
    ch_part(b, 1)
    b.add(W(P.btok[4]))
    b("s_waitcnt lgkmcnt(0)"); b("s_barrier")
    ch_rdpart(b, XP)
    ch_in(b, 1, XP)
    tk1 = ch_c(b, 1, [P.ld() for _ in range(4)])
    stamp(b, 'trs', 2)
    s1i, s1c = poll_pair(af_issue(2), af_check('ssm'), 's1')
    s2i, s2c = poll_pair(af_issue(3), af_check('ssm'), 's2')
    a2i, a2c = poll_pair(af_issue(2), af_check('ffn'), 'a2')
    a3i, a3c = poll_pair(af_issue(3), af_check('ffn'), 'a3')
    b.add(s1i)
    for _ in range(6): b.add(P.ld())
    PD = 40; o = OPT
    plan = [('A', 4), ('at', [W(tk1)] + flag_store(3, vT0) + stamp_ins('flg', 2) + s1c + a_pf(11, 10), o['h_s1']), ('A', 8 + 8),
            ('at', s2i, o['h_s2'] - PD), ('A', 6), ('at', s2c + a_pf(21, 10), o['h_s2']), ('A', 6 + 8),
            ('at', a2i, o['h_l2'] - PD), ('A', 6), ('at', a2c + a_pf(31, 11), o['h_l2']), ('A', 6 + 10),
            ('at', a3i, o['h_l3'] - PD), ('A', 6), ('at', a3c + a_pf(42, 5), o['h_l3']), ('A', 6 + 10)]
    phase2(b, P, plan, [0, 1, 2, 3, 4], pipe0=400)
    return b

def main():
    pro = prologue(); ffn = ffn_path(); ssm = ssm_path()
    pl, n0 = resolve_stamps(pro.l, 0)
    fl, n1 = resolve_stamps(ffn.l, len(n0))
    sl, n2 = resolve_stamps(ssm.l, len(n0))
    out = []; stats = {}
    st = finalize(pl, State(), out, stats)
    st2 = st.copy()
    finalize(fl, st, out, stats)
    finalize(sl, st2, out, stats)
    for sp in slow_paths: finalize(sp.l, State(), out, stats)
    print("stats", stats, "instrs", len(out), file=sys.stderr)
    ref = open('parallel_sum__ssm_conv_s5__geglu_ffn__prompt.s.ref').read().split('\n')
    hdr = [l for l in ref if l.startswith(';') and '@launch' not in l]
    L = hdr + [f"; @launch grid=(256,1,1) block=(256,1,1) lds={LDS_BYTES}",
               '.amdgcn_target "amdgcn-amd-amdhsa--gfx950"', '.text', f'.globl {KNAME}', '.p2align 8',
               f'.type {KNAME},@function', f'{KNAME}:']
    for i in out:
        t = i.text
        if t.startswith('<'): continue
        t = t.replace('NPAGES_M1', '((L_end-L_pc0)>>12)-1')
        L.append(t if i.kind == 'label' else '  ' + t)
    L += ['L_end:', '  s_endpgm', '.section .rodata,"a"', '.p2align 6', f'.amdhsa_kernel {KNAME}',
          '  .amdhsa_next_free_vgpr 512', '  .amdhsa_next_free_sgpr 102', '  .amdhsa_accum_offset 256',
          '  .amdhsa_group_segment_fixed_size 0', '  .amdhsa_kernarg_size 128', '  .amdhsa_user_sgpr_count 2',
          '  .amdhsa_user_sgpr_kernarg_segment_ptr 1', '  .amdhsa_system_sgpr_workgroup_id_x 1', '.end_amdhsa_kernel', '']
    open(sys.argv[1], 'w').write('\n'.join(L))
    json.dump({'ffn': n0 + n1, 'ssm': n0 + n2, 'map': OPT['map']}, open(sys.argv[1] + '.json', 'w'))

main()
```
